```python
import torch

def _softmax(x, axis=-1):
    return torch.softmax(x, dim=axis)
def _gelu(x):
    return torch.nn.functional.gelu(x, approximate="tanh")
def _silu(x):
    return torch.nn.functional.silu(x)
def _sigmoid(x):
    return torch.sigmoid(x)
def _layernorm(x, axis=-1, eps=1e-5):
    m = x.mean(dim=axis, keepdim=True)
    v = x.var(dim=axis, keepdim=True, unbiased=False)
    return (x - m) / torch.sqrt(v + eps)
def _scatter_add(tgt, idx, src, axis=0):
    return tgt.clone().index_add_(axis, idx, src)
def _segment_sum(src, seg, n):
    out = torch.zeros((n,) + src.shape[1:], dtype=src.dtype)
    return out.index_add_(0, seg, src)
def _pad(x, pw):
    flat = tuple(v for pair in reversed(pw) for v in pair)
    return torch.nn.functional.pad(x, flat)

kernel_name = 'gated_mix__grouped_kv_mqa__sliding_block__prompt'

def setup_inputs():

    _w = (lambda a: (lambda t: t.to(torch.bfloat16) if t.is_floating_point() else t)(torch.as_tensor(a)))
    def _A_setup():
        B, S, D, H = 1, 2048, 1024, 32
        Dh = D // H
        return {
            "x": _w((lambda *s: torch.randn(*s, dtype=torch.bfloat16) * 0.05)(B, S, D)),
            "wq": _w((lambda *s: torch.randn(*s, dtype=torch.bfloat16) * 0.8)(D, H * Dh)),
            "wk": _w((lambda *s: torch.randn(*s, dtype=torch.bfloat16) * 0.8)(D, Dh)),
            "wv": _w((lambda *s: torch.randn(*s, dtype=torch.bfloat16) * 0.2)(D, Dh)),
            "wo": _w((lambda *s: torch.randn(*s, dtype=torch.bfloat16) * 0.2)(H * Dh, D)),
        }
    _A_in = _A_setup()

    def _B_setup():
        B, S, D = 1, 2048, 1024
        return {
            "x": _w((lambda *s: torch.randn(*s, dtype=torch.bfloat16) * 0.05)(B, S, D)),
            "wqkv": _w((lambda *s: torch.randn(*s, dtype=torch.bfloat16) * 0.8)(D, 3 * D)),
            "wo": _w((lambda *s: torch.randn(*s, dtype=torch.bfloat16) * 0.05)(D, D)),
        }
    _B_in = _B_setup()

    return {
        "A_x": _A_in["x"],
        "A_wq": _A_in["wq"],
        "A_wk": _A_in["wk"],
        "A_wv": _A_in["wv"],
        "A_wo": _A_in["wo"],
        "B_x": _B_in["x"],
        "B_wqkv": _B_in["wqkv"],
        "B_wo": _B_in["wo"],
        "gate_w": _w((lambda *s: torch.randn(*s, dtype=torch.bfloat16) * 0.05)(1024) * 16.0),
    }

def reference(A_x, A_wq, A_wk, A_wv, A_wo, B_x, B_wqkv, B_wo, gate_w):
    def _A_ref(x, wq, wk, wv, wo):
        B, S, D = x.shape
        H = 32
        Dh = D // H
        q = (lambda x, *d: x.permute(*d))((x @ wq).reshape(B, S, H, Dh), 0, 2, 1, 3)
        k = x @ wk
        v = x @ wv
        scores = torch.einsum("bhqd,bkd->bhqk", q, k) * (Dh ** -0.5)
        p = _softmax(scores, axis=-1)
        o = torch.einsum("bhqk,bkd->bhqd", p, v)
        return (lambda x, *d: x.permute(*d))(o, 0, 2, 1, 3).reshape(B, S, H * Dh) @ wo

    def _B_ref(x, wqkv, wo):
        B, S, D = x.shape
        H = 32; Dh = D // H; W = 256
        qkv = (lambda x, *d: x.permute(*d))((x @ wqkv).reshape(B, S, 3, H, Dh), 2, 0, 3, 1, 4)
        q, k, v = qkv[0], qkv[1], qkv[2]
        scores = torch.einsum("bhqd,bhkd->bhqk", q, k) * (Dh ** -0.5)
        idx = torch.arange(S)
        mask = (idx[:, None] - idx[None, :] >= 0) & (idx[:, None] - idx[None, :] < W)
        scores = torch.where(mask[None, None], scores, -1e9)
        p = _softmax(scores, axis=-1)
        o = torch.einsum("bhqk,bhkd->bhqd", p, v)
        return (lambda x, *d: x.permute(*d))(o, 0, 2, 1, 3).reshape(B, S, D) @ wo

    x = A_x
    g = _sigmoid((x * gate_w).sum(-1, keepdims=True))
    a = _A_ref(x, A_wq, A_wk, A_wv, A_wo)
    b = _B_ref(x, B_wqkv, B_wo)
    return g * a + (1 - g) * b
```

```python
import re

class Asm:
    def __init__(self):
        self.lines = []
        self.uid = 0
    def __call__(self, s):
        for ln in s.split("\n"):
            ln = ln.strip()
            if ln:
                self.lines.append(ln)
    def label(self, name):
        self.lines.append(name + ":")
    def newlabel(self, base="L"):
        self.uid += 1
        return f"{base}_{self.uid}"
    def text(self):
        out = []
        for ln in self.lines:
            if ln.endswith(":") or ln.startswith(".") or ln.startswith(";"):
                out.append(ln)
            else:
                out.append("    " + ln)
        return "\n".join(out) + "\n"

def v(b, n=1):
    return f"v{b}" if n == 1 else f"v[{b}:{b+n-1}]"
def s(b, n=1):
    return f"s{b}" if n == 1 else f"s[{b}:{b+n-1}]"

TRANS = ("v_exp_f32", "v_log_f32", "v_rcp_f32", "v_rsq_f32", "v_sqrt_f32", "v_sin_f32", "v_cos_f32", "v_exp_f16", "v_rcp_iflag_f32")
_reg = re.compile(r"^(-|\|)?(abs\()?([vsa])(\d+|\[(\d+):(\d+)\])\)?\|?$")
def regs_of(tok):
    tok = tok.strip()
    m = _reg.match(tok)
    if m:
        k = m.group(3)
        if m.group(5) is not None:
            return [(k, i) for i in range(int(m.group(5)), int(m.group(6)) + 1)]
        return [(k, int(m.group(4)))]
    if tok in ("vcc", "vcc_lo", "vcc_hi"): return [("vcc", 0)]
    if tok in ("exec", "exec_lo", "exec_hi"): return [("exec", 0)]
    if tok == "m0": return [("m0", 0)]
    return []

class Ins:
    def __init__(self, text, idx):
        self.text = text; self.idx = idx
        t = text.split(";")[0].split("//")[0].strip()
        parts = t.split(None, 1)
        self.op = parts[0]
        rest = parts[1] if len(parts) > 1 else ""
        toks = [x.strip() for x in rest.split(",")] if rest else []
        ops = []
        for x in toks:
            ops.append(x.split()[0] if x.split() else x)
        self.mods = rest
        self.ops = ops
        op = self.op
        self.w = []; self.r = []; self.A = []; self.B = []; self.C = []; self.passes = 0
        self.cls = "other"; self.states = 1
        self.storedata = []
        R = [regs_of(x) for x in ops]
        if op.startswith("v_mfma") or op.startswith("v_smfmac"):
            self.cls = "mfma"
            self.passes = 8 if "32x32" in op else (2 if "4x4" in op else 4)
            self.w = R[0]; self.A = R[1]; self.B = R[2]
            if op.startswith("v_smfmac"):
                self.C = R[0]; self.B = R[2] + R[3]
            else:
                self.C = R[3]
            self.r = self.A + self.B + self.C
        elif op.startswith("v_"):
            self.cls = "valu"
            base = op.replace("_e32", "").replace("_e64", "")
            self.trans = base in TRANS
            if self.trans: self.states = 2
            if base.startswith("v_cmp"):
                self.w = R[0] + ([("exec", 0)] if base.startswith("v_cmpx") else []); self.r = sum(R[1:], [])
            elif base in ("v_add_co_u32", "v_sub_co_u32", "v_addc_co_u32", "v_subb_co_u32"):
                self.w = R[0] + R[1]; self.r = sum(R[2:], [])
            elif base.startswith("v_permlane") and "swap" in base:
                self.w = R[0] + R[1]; self.r = R[0] + R[1]
            elif base in ("v_fmac_f32", "v_dot2c_f32_bf16", "v_writelane_b32"):
                self.w = R[0]; self.r = sum(R, [])
            elif base == "v_nop":
                pass
            else:
                self.w = R[0]; self.r = sum(R[1:], [])
        elif op.startswith("ds_"):
            self.cls = "ds"
            if op.startswith("ds_read") or op.startswith("ds_bpermute") or op.startswith("ds_swizzle") or "_rtn" in op:
                self.w = R[0]; self.r = sum(R[1:], [])
            else:
                self.r = sum(R, [])
        elif op.startswith("buffer_") or op.startswith("global_"):
            self.cls = "vmem"
            self.lds = (" lds" in " " + rest) or ("_lds_" in op)
            if op in ("buffer_inv", "buffer_wbl2"):
                pass
            elif self.lds:
                self.r = sum(R, []) + [("m0", 0)]
            elif "_load_" in op:
                self.w = R[0]; self.r = sum(R[1:], [])
            elif "atomic" in op:
                ret = " sc0" in rest
                if op.startswith("global") and ret: self.w = R[0]; self.r = sum(R[1:], [])
                else:
                    self.r = sum(R, [])
                    if ret: self.w = R[0]
            else:
                self.r = sum(R, [])
                if "x3" in op or "x4" in op:
                    self.storedata = R[0] if op.startswith("buffer") else R[1]
        elif op.startswith("s_"):
            self.cls = "salu"
            if op == "s_nop":
                self.states = int(ops[0], 0) + 1
            elif op.startswith("s_cmp") or op.startswith("s_bitcmp") or op.startswith("s_cbranch") or op in ("s_branch", "s_waitcnt", "s_barrier", "s_endpgm", "s_sleep", "s_setprio"):
                self.r = sum(R, [])
            else:
                self.w = R[0] if R else []; self.r = sum(R[1:], [])
                if "saveexec" in op: self.w = self.w + [("exec", 0)]

def need(p, c):
    n = 0; why = ""
    def upd(k, w):
        nonlocal n, why
        if k > n: n = k; why = w
    pw = set(p.w)
    if p.cls == "valu":
        vw = {x for x in pw if x[0] in "va"}
        sw = {x for x in pw if x[0] in ("s", "vcc")}
        if c.cls == "mfma" and vw & set(c.r): upd(2, "VALU->MFMA src")
        if c.cls == "mfma" and ("exec", 0) in pw: upd(4, "VALU exec->MFMA")
        if c.cls == "valu":
            if getattr(p, "trans", False) and not c.trans and vw & set(c.r): upd(1, "trans->VALU")
            if c.op.startswith(("v_readfirstlane", "v_readlane")) and vw & set(c.r): upd(1, "VALU->readlane")
            if c.op.startswith("v_permlane") and vw & set(c.r): upd(2, "VALU->permlane")
            if ("dpp" in c.op or "row_" in c.mods or "quad_perm" in c.mods) and vw & set(c.r): upd(2, "VALU->DPP")
            if sw & set(c.r): upd(4 if c.op.startswith(("v_readlane", "v_writelane")) else 2, "VALU sgpr->VALU")
        if c.cls == "vmem" and sw & set(c.r): upd(5, "VALU sgpr->VMEM")
    if p.cls == "mfma":
        P = p.passes
        if c.cls == "mfma":
            if pw & set(c.A + c.B): upd({2: 5, 4: 8, 8: 12}[P], "MFMA D->MFMA A/B")
            if pw & set(c.C):
                if list(c.C) == list(p.w) and c.passes == P: upd(2 if P == 2 else 0, "chain")
                else: upd({2: 4, 4: 6, 8: 10}[P], "MFMA D->MFMA C overlap")
        elif c.cls in ("valu", "vmem", "ds"):
            if pw & (set(c.r) | set(c.w)): upd({2: 5, 4: 8, 8: 12}[P], "MFMA D->VALU/mem")
            if c.cls == "valu" and set(p.C) & set(c.w): upd({2: 1, 4: 3, 8: 7}[P], "MFMA C WAR")
    if p.cls == "salu" and ("m0", 0) in pw and c.cls == "vmem" and getattr(c, "lds", False): upd(1, "m0->DMA")
    if p.cls == "vmem" and p.storedata and set(p.storedata) & set(c.w):
        upd(2 if c.cls == "valu" else 1, "store data WAR")
    return n, why

def check_hazards(text, verbose=True):
    ins = []; labels = {}
    for ln in text.split("\n"):
        t = ln.split(";")[0].strip()
        if not t or t.startswith("."): continue
        if t.endswith(":"):
            labels[t[:-1]] = len(ins); continue
        ins.append(Ins(t, len(ins)))
    preds = [[] for _ in ins]
    for i, x in enumerate(ins):
        if i + 1 < len(ins) and x.op not in ("s_branch", "s_endpgm", "s_setpc_b64"):
            preds[i + 1].append(i)
        if x.op.startswith("s_cbranch") or x.op == "s_branch":
            tgt = labels.get(x.ops[0])
            if tgt is not None and tgt < len(ins): preds[tgt].append(i)
    bad = []
    MAXD = 13
    for i, c in enumerate(ins):
        if c.cls in ("other",): continue
        seen = {}
        stack = [(p, 0) for p in preds[i]]
        while stack:
            j, d = stack.pop()
            if d >= MAXD: continue
            if j in seen and seen[j] <= d: continue
            seen[j] = d
            n, why = need(ins[j], c)
            if n > d:
                bad.append((j, i, n, d, why))
            for p in preds[j]:
                stack.append((p, d + ins[j].states))
    if verbose:
        for j, i, n, d, why in bad[:40]:
            print(f"HAZARD {why}: need {n} have {d}\n   [{j}] {ins[j].text}\n   [{i}] {ins[i].text}")
    return bad
```

```python
import math, struct, sys
from asmlib import *

WS_QA = 0
WS_QB = 4 << 20
WS_KVB = 8 << 20
WS_KVA = 16 << 20
WS_G = (16 << 20) + (256 << 10)
WS_O = 20 << 20
WS_STAMP = 31 << 20
WS_SIZE = 32 << 20
def f2u(x): return struct.unpack("<I", struct.pack("<f", x))[0]
LOG2E = math.log2(math.e)
QSCALE = LOG2E / math.sqrt(32.0)

class Opt:
    stamps = False
    no_dma = False
    no_bar = False
    no_rd = False
    no_mfma = False
    dma_pos = 0
    prio = 0

def kd(name, vgpr=256, sgpr=96):
    return f""".section .rodata,"a"
.p2align 6
.amdhsa_kernel {name}
  .amdhsa_next_free_vgpr {vgpr}
  .amdhsa_next_free_sgpr {sgpr}
  .amdhsa_accum_offset {vgpr}
  .amdhsa_group_segment_fixed_size 0
  .amdhsa_kernarg_size 96
  .amdhsa_user_sgpr_count 2
  .amdhsa_user_sgpr_kernarg_segment_ptr 1
  .amdhsa_system_sgpr_workgroup_id_x 1
.end_amdhsa_kernel
"""
def head(name):
    return f""".text
.globl {name}
.p2align 8
.type {name},@function
{name}:
"""
def stamp(a, i):
    if Opt.stamps: a(f"s_memtime s[{64+2*i}:{65+2*i}]")
def rstamp(a, i):
    if Opt.stamps: a(f"s_memrealtime s[{64+2*i}:{65+2*i}]")
def stamp_out(a, n, SWS, sW, slot=0):
    if not Opt.stamps: return
    a("s_waitcnt lgkmcnt(0)")
    a(f"s_lshl_b32 s90, s2, 3\ns_add_u32 s90, s90, {s(sW)}\ns_lshl_b32 s90, s90, 6\ns_add_u32 s90, s90, {WS_STAMP + slot * 131072}")
    a("s_mov_b64 exec, 1\nv_mov_b32 v254, 0")
    for i in range(n):
        a(f"v_mov_b32 v255, s{64+2*i}")
        a(f"buffer_store_dword v255, v254, {s(SWS,4)}, s90 offen offset:{4*i}")
    a("s_waitcnt vmcnt(0)\ns_mov_b64 exec, -1")

def decode_wg(a, sRB, sHP, t0, t1):
    a(f"""
    s_and_b32 {s(t0)}, s2, 1
    s_lshl_b32 {s(t0)}, {s(t0)}, 3
    s_lshr_b32 {s(t1)}, s2, 3
    s_and_b32 {s(t1)}, {s(t1)}, 7
    s_add_u32 {s(sRB)}, {s(t0)}, {s(t1)}
    s_and_b32 {s(t0)}, s2, 6
    s_lshl_b32 {s(t0)}, {s(t0)}, 1
    s_lshr_b32 {s(t1)}, s2, 6
    s_add_u32 {s(sHP)}, {s(t0)}, {s(t1)}
    """)
def srd(a, r, size):
    a(f"s_mov_b32 {s(r+2)}, {hex(size)}\ns_mov_b32 {s(r+3)}, 0x20000")

def interleave(a, mfmas, fillers):
    for i, m in enumerate(mfmas):
        a(m)
        for f in fillers.get(i, []): a(f)

STAGE = 49152
SIDE0 = 3 * STAGE
K1_LDS = SIDE0 + 3 * 4096

def gen_k1(name):
    a = Asm()
    SX, SWQ, SWB, SSD, SWS = 4, 8, 12, 16, 20
    sRB, sHP, sW, sJT = 24, 25, 26, 27
    sT0, sT1, sT2, sT3 = 28, 29, 30, 31
    sGATE = 32; sKV = 36
    sC = 40; sDst = 41; sXw = 42; sWw = 43; sKx = 44; sKq = 45; sKb = 46; sKs = 47
    sDelta = 48; sSDelta = 49; sRdSt = 50; sSDst = 51; sPar = 52; sA = 53; sB = 54
    sBase = 55; sStrT = 56; sStrC = 57; sScale = 58; sK1 = 59; sK2 = 60; sK3 = 61
    vLane = 1; vM = 2; vH = 3; vT = 4; vU = 5; vI = 6; vG = 7
    vDX0, vDX1, vDWq, vDWb, vDS = 8, 9, 10, 11, 12
    vSt = 13
    vXA = 14
    vWA = 18
    vSX = 22; vSW0 = 23; vSW1 = 24
    SFX = 28; SFW = 32
    FX = [36, 68]
    FW = [52, 84]
    ACC = 100
    SACC = 164
    a(f"""
    s_cmp_ge_u32 s2, 256
    s_cbranch_scc1 {name}_end
    s_load_dwordx2 {s(SX,2)}, s[0:1], 0
    s_load_dwordx2 {s(SWQ,2)}, s[0:1], 8
    s_load_dwordx2 {s(SWB,2)}, s[0:1], 48
    s_load_dwordx4 {s(sKV,4)}, s[0:1], 16
    s_load_dwordx2 {s(sGATE,2)}, s[0:1], 64
    s_load_dwordx2 {s(SWS,2)}, s[0:1], 88
    """)
    stamp(a, 0); rstamp(a, 4)
    decode_wg(a, sRB, sHP, sT0, sT1)
    srd(a, SX, 0x400000); srd(a, SWQ, 0x200000); srd(a, SWB, 0x600000); srd(a, SSD, 0x10000); srd(a, SWS, WS_SIZE)
    a(f"""
    s_lshr_b32 {s(sJT)}, {s(sHP)}, 2
    v_lshrrev_b32 {v(vT)}, 6, v0
    v_and_b32 {v(vLane)}, 63, v0
    v_readfirstlane_b32 {s(sW)}, {v(vT)}
    v_lshrrev_b32 {v(vG)}, 4, {v(vLane)}
    s_lshl_b32 {s(sT0)}, {s(sRB)}, 7
    s_lshl_b32 {s(sT1)}, {s(sW)}, 4
    s_add_u32 {s(sT0)}, {s(sT0)}, {s(sT1)}
    s_and_b32 {s(sT2)}, {s(sW)}, 1
    s_mul_i32 {s(sT3)}, {s(sT2)}, 6
    v_lshrrev_b32 {v(vT)}, 3, {v(vLane)}
    v_add_u32 {v(vU)}, {s(sT0)}, {v(vT)}
    v_lshlrev_b32 {v(vU)}, 11, {v(vU)}
    v_and_b32 {v(vDS)}, 7, {v(vLane)}
    v_xor_b32 {v(vDX0)}, {v(vDS)}, {v(vG)}
    v_xor_b32 {v(vDX0)}, {s(sT3)}, {v(vDX0)}
    v_xor_b32 {v(vDX1)}, 4, {v(vDX0)}
    v_lshl_add_u32 {v(vDX0)}, {v(vDX0)}, 4, {v(vU)}
    v_lshl_add_u32 {v(vDX1)}, {v(vDX1)}, 4, {v(vU)}
    v_add_u32 {v(vDX1)}, 0x4000, {v(vDX1)}
    s_lshl_b32 {s(sT1)}, {s(sW)}, 3
    s_lshl_b32 {s(sT2)}, {s(sT2)}, 2
    v_add_u32 {v(vT)}, {s(sT1)}, {v(vT)}
    v_and_b32 {v(vU)}, 1, {v(vG)}
    v_lshlrev_b32 {v(vU)}, 1, {v(vU)}
    v_xor_b32 {v(vU)}, {v(vU)}, {v(vDS)}
    v_xor_b32 {v(vU)}, {s(sT2)}, {v(vU)}
    v_lshlrev_b32 {v(vU)}, 4, {v(vU)}
    s_lshl_b32 {s(sT0)}, {s(sHP)}, 7
    v_add_u32 {v(vU)}, {s(sT0)}, {v(vU)}
    v_lshl_add_u32 {v(vDWq)}, {v(vT)}, 11, {v(vU)}
    v_mul_u32_u24 {v(vDWb)}, 6144, {v(vT)}
    v_add_u32 {v(vDWb)}, {v(vDWb)}, {v(vU)}
    s_lshl_b32 {s(sT1)}, {s(sW)}, 9
    v_lshlrev_b32 {v(vDS)}, 4, {v(vLane)}
    v_add_u32 {v(vDS)}, {s(sT1)}, {v(vDS)}
    s_lshl_b32 {s(sXw)}, {s(sW)}, 11
    s_lshl_b32 {s(sWw)}, {s(sW)}, 10
    s_add_u32 {s(sWw)}, {s(sWw)}, 16384
    s_mov_b32 {s(sDst)}, 0
    s_mov_b32 {s(sKx)}, 0
    s_mov_b32 {s(sKq)}, 0
    s_mov_b32 {s(sKb)}, 0
    s_mov_b32 {s(sKs)}, 0
    s_add_u32 {s(sSDst)}, {s(sT1)}, {SIDE0}
    s_waitcnt lgkmcnt(0)
    s_cmp_eq_u32 {s(sJT)}, 0
    s_cselect_b32 {s(SSD)}, {s(sKV)}, {s(sKV+2)}
    s_cselect_b32 {s(SSD+1)}, {s(sKV+1)}, {s(sKV+3)}
    """)
    def dma_group():
        lab = a.newlabel(name + "_sd")
        return [
            [f"s_add_u32 {s(sA)}, {s(sDst)}, {s(sXw)}", f"s_add_u32 {s(sB)}, {s(sDst)}, {s(sWw)}",
             f"s_cmp_ge_u32 {s(sJT)}, 2", f"s_cbranch_scc1 {lab}",
             f"s_mov_b32 m0, {s(sSDst)}", "s_mov_b32 exec_hi, 0",
             f"buffer_load_dwordx4 {v(vDS)}, {s(SSD,4)}, {s(sKs)} offen lds", "s_mov_b32 exec_hi, -1", f"{lab}:"],
            [f"s_mov_b32 m0, {s(sA)}", f"s_add_u32 {s(sT2)}, {s(sKb)}, 2048",
             f"buffer_load_dwordx4 {v(vDX0)}, {s(SX,4)}, {s(sKx)} offen lds"],
            [f"s_add_u32 m0, {s(sA)}, 1024", f"s_add_u32 {s(sT3)}, {s(sKb)}, 4096",
             f"buffer_load_dwordx4 {v(vDX1)}, {s(SX,4)}, {s(sKx)} offen lds"],
            [f"s_mov_b32 m0, {s(sB)}", f"s_add_u32 {s(sKx)}, {s(sKx)}, 128",
             f"buffer_load_dwordx4 {v(vDWq)}, {s(SWQ,4)}, {s(sKq)} offen lds"],
            [f"s_add_u32 m0, {s(sB)}, 8192", f"s_add_u32 {s(sKq)}, {s(sKq)}, 131072",
             f"buffer_load_dwordx4 {v(vDWb)}, {s(SWB,4)}, {s(sKb)} offen lds"],
            [f"s_add_u32 m0, {s(sB)}, 16384", f"s_add_u32 {s(sKb)}, {s(sKb)}, 393216",
             f"buffer_load_dwordx4 {v(vDWb)}, {s(SWB,4)}, {s(sT2)} offen lds"],
            [f"s_add_u32 m0, {s(sB)}, 24576", f"s_add_u32 {s(sKs)}, {s(sKs)}, 4096",
             f"buffer_load_dwordx4 {v(vDWb)}, {s(SWB,4)}, {s(sT3)} offen lds"],
            [f"s_add_u32 {s(sDst)}, {s(sDst)}, {STAGE}", f"s_add_u32 {s(sSDst)}, {s(sSDst)}, 4096",
             f"s_cmp_eq_u32 {s(sDst)}, {3*STAGE}", f"s_cselect_b32 {s(sDst)}, 0, {s(sDst)}",
             f"s_cselect_b32 {s(sT2)}, 12288, 0", f"s_sub_u32 {s(sSDst)}, {s(sSDst)}, {s(sT2)}"],
        ]
    for _ in range(3):
        for p in dma_group():
            a("\n".join(p))
    a(f"""
    v_and_b32 {v(vM)}, 31, v0
    v_lshrrev_b32 {v(vH)}, 5, {v(vLane)}
    v_and_b32 {v(vI)}, 15, v0
    s_cmp_lg_u32 {s(sJT)}, 2
    s_cbranch_scc1 {name}_nogate
    v_lshlrev_b32 {v(vT)}, 2, v0
    global_load_dword {v(vU)}, {v(vT)}, {s(sGATE,2)}
    v_lshlrev_b32 {v(vT)}, 4, v0
    v_add_u32 {v(vT)}, {SIDE0}, {v(vT)}
    s_waitcnt vmcnt(0)
    ds_write_b16 {v(vT)}, {v(vU)}
    ds_write_b16_d16_hi {v(vT)}, {v(vU)} offset:8
    {name}_nogate:
    """)
    def xaddr(dst, vrow, vk, t1, t2):
        a(f"""
        v_bfe_u32 {v(t1)}, {v(vrow)}, 1, 3
        v_bfe_u32 {v(t2)}, {v(vrow)}, 4, 1
        v_mul_u32_u24 {v(t2)}, 6, {v(t2)}
        v_xor_b32 {v(t1)}, {v(t1)}, {v(t2)}
        v_xor_b32 {v(t1)}, {v(t1)}, {v(vk)}
        v_lshlrev_b32 {v(t1)}, 4, {v(t1)}
        v_lshl_add_u32 {v(dst)}, {v(vrow)}, 7, {v(t1)}
        """)
    t1, t2, vR0, vR1 = FX[0], FX[0] + 1, FX[0] + 2, FX[0] + 3
    a(f"""
    v_mov_b32 {v(vR0)}, {v(vI)}
    v_add_u32 {v(vR1)}, 16, {v(vI)}
    s_cmp_lt_u32 {s(sW)}, 6
    s_cbranch_scc1 {name}_nov
    v_and_b32 {v(vR0)}, 12, {v(vI)}
    v_add_u32 {v(vR0)}, {v(vR0)}, {v(vI)}
    v_add_u32 {v(vR1)}, 4, {v(vR0)}
    {name}_nov:
    """)
    xaddr(vXA, vR0, vG, t1, t2)
    xaddr(vXA + 1, vR1, vG, t1, t2)
    a(f"""
    s_and_b32 {s(sT0)}, {s(sW)}, 1
    s_lshl_b32 {s(sT0)}, {s(sT0)}, 13
    v_add_u32 {v(vXA)}, {s(sT0)}, {v(vXA)}
    v_add_u32 {v(vXA+1)}, {s(sT0)}, {v(vXA+1)}
    v_xor_b32 {v(vXA+2)}, 64, {v(vXA)}
    v_xor_b32 {v(vXA+3)}, 64, {v(vXA+1)}
    v_mov_b32 {v(vR0)}, {v(vM)}
    s_cmp_lg_u32 {s(sJT)}, 1
    s_cbranch_scc1 {name}_nosw
    v_and_b32 {v(vR0)}, 0x13, {v(vM)}
    v_and_b32 {v(vR1)}, 4, {v(vM)}
    v_lshl_or_b32 {v(vR0)}, {v(vR1)}, 1, {v(vR0)}
    v_and_b32 {v(vR1)}, 8, {v(vM)}
    v_lshrrev_b32 {v(vR1)}, 1, {v(vR1)}
    v_or_b32 {v(vR0)}, {v(vR0)}, {v(vR1)}
    {name}_nosw:
    """)
    xaddr(vSX, vR0, vH, t1, t2)
    a(f"""
    s_and_b32 {s(sT0)}, {s(sW)}, 3
    s_lshl_b32 {s(sT1)}, {s(sT0)}, 5
    v_xor_b32 {v(vSX)}, {s(sT1)}, {v(vSX)}
    s_and_b32 {s(sT1)}, {s(sHP)}, 3
    s_lshl_b32 {s(sT1)}, {s(sT1)}, 12
    v_add_u32 {v(vSX)}, {s(sT1)}, {v(vSX)}
    v_lshrrev_b32 {v(vT)}, 2, {v(vI)}
    v_lshl_add_u32 {v(t1)}, {v(vG)}, 3, {v(vT)}
    v_and_b32 {v(vU)}, 3, {v(vI)}
    v_lshlrev_b32 {v(vU)}, 3, {v(vU)}                     ; 8*(i&3)
    v_lshrrev_b32 {v(t2)}, 3, {v(vI)}
    v_lshl_or_b32 {v(t2)}, {v(t2)}, 5, {v(vU)}            ; + 32*((i>>3)&1)
    v_and_b32 {v(vSt)}, 1, {v(vG)}
    v_lshl_or_b32 {v(t2)}, {v(vSt)}, 6, {v(t2)}           ; + 64*(G&1)
    v_lshl_add_u32 {v(vWA)}, {v(t1)}, 7, {v(t2)}
    s_lshr_b32 {s(sT1)}, {s(sW)}, 1
    s_lshl_b32 {s(sT1)}, {s(sT1)}, 13
    s_add_u32 {s(sT1)}, {s(sT1)}, 16384
    v_add_u32 {v(vWA)}, {s(sT1)}, {v(vWA)}
    v_xor_b32 {v(vWA+1)}, 32, {v(vWA)}
    v_xor_b32 {v(vWA+2)}, 64, {v(vWA)}
    v_xor_b32 {v(vWA+3)}, 0x60, {v(vWA)}
    v_lshl_add_u32 {v(vT)}, {v(vH)}, 3, {v(vT)}
    s_lshl_b32 {s(sT0)}, {s(sT0)}, 4
    v_add_u32 {v(vT)}, {s(sT0)}, {v(vT)}
    v_lshl_or_b32 {v(vU)}, {v(vSt)}, 5, {v(vU)}
    v_lshl_add_u32 {v(vSW0)}, {v(vT)}, 6, {v(vU)}
    v_add_u32 {v(vSW0)}, {SIDE0}, {v(vSW0)}
    v_add_u32 {v(vSW1)}, 256, {v(vSW0)}
    s_cmp_lg_u32 {s(sJT)}, 2
    s_cbranch_scc1 {name}_nogate2
    v_lshlrev_b32 {v(vSW0)}, 3, {v(vT)}
    v_add_u32 {v(vSW0)}, {SIDE0}, {v(vSW0)}
    v_add_u32 {v(vSW1)}, 32, {v(vSW0)}
    {name}_nogate2:
    s_lshr_b32 {s(sPar)}, {s(sW)}, 2
    s_cmp_eq_u32 {s(sJT)}, 3
    s_cselect_b32 {s(sPar)}, 2, {s(sPar)}
    s_mov_b32 {s(sC)}, 0
    s_mov_b32 {s(sRdSt)}, 0
    s_mov_b32 {s(sK1)}, {STAGE}
    s_movk_i32 {s(sK2)}, 4096
    s_movk_i32 {s(sK3)}, -8192
    s_cmp_eq_u32 {s(sJT)}, 2
    s_cselect_b32 {s(sK2)}, 512, {s(sK2)}
    s_cselect_b32 {s(sK3)}, 512, {s(sK3)}
    """)
    for r in range(ACC, SACC + 16):
        a(f"v_mov_b32 {v(r)}, 0")

    def rdx(b, st, ts): return f"ds_read_b128 {v(FX[b]+4*ts,4)}, {v(vXA+2*st+(ts&1))} offset:{(ts>>1)*4096}"
    def rdw(b, st, cs): return [f"ds_read_b64_tr_b16 {v(FW[b]+4*cs,2)}, {v(vWA+cs)} offset:{st*4096}",
                                f"ds_read_b64_tr_b16 {v(FW[b]+4*cs+2,2)}, {v(vWA+cs)} offset:{st*4096+512}"]
    def reads(b, st):
        if Opt.no_rd: return ["s_nop 0"] * 12
        return [rdx(b, st, 0)] + rdw(b, st, 0) + rdw(b, st, 1) + rdw(b, st, 2) + rdw(b, st, 3) + [rdx(b, st, 1), rdx(b, st, 2), rdx(b, st, 3)]
    order = [(ts, cs if ts % 2 == 0 else 3 - cs) for ts in range(4) for cs in range(4)]
    def mf(b, ts, cs, swap):
        if swap:
            acc = ACC + 16 * ((ts & 2) | (cs & 1)) + 4 * ((cs & 2) | (ts & 1))
            A, B = FX[b] + 4 * ts, FW[b] + 4 * cs
        else:
            acc = ACC + 16 * ts + 4 * cs
            A, B = FW[b] + 4 * cs, FX[b] + 4 * ts
        if Opt.no_mfma: return "s_nop 0"
        return f"v_mfma_f32_16x16x32_bf16 {v(acc,4)}, {v(A,4)}, {v(B,4)}, {v(acc,4)}"
    a(f"""
    s_waitcnt vmcnt(12) lgkmcnt(0)
    s_barrier
    """)
    stamp(a, 1)
    if Opt.stamps: a("s_waitcnt lgkmcnt(0)")
    a("\n".join(reads(0, 0)))
    a(f"""
    s_cmp_ge_u32 {s(sW)}, 6
    s_cbranch_scc1 {name}_vloop
    """)
    def chunk(swap, dma, vm, last):
        lab1 = a.newlabel(name + "_sr"); lab2 = a.newlabel(name + "_sm"); lab3 = a.newlabel(name + "_sv")
        rd = reads(1, 1)
        need = {0: 3, 1: 5, 2: 7, 3: 9, 4: 10, 8: 11, 12: 12}
        issued = 0
        for i, (ts, cs) in enumerate(order):
            if i in need:
                a(f"s_waitcnt lgkmcnt({min(15, 12 - need[i] + issued)})")
            a(mf(0, ts, cs, swap))
            if i < 12:
                a(rd[i]); issued += 1
            if i == 12:
                a(f"""
                s_and_b32 {s(sT0)}, {s(sC)}, 1
                s_cmp_lg_u32 {s(sT0)}, {s(sPar)}
                s_cbranch_scc1 {lab1}
                ds_read_b128 {v(SFX,4)}, {v(vSX)}
                ds_read_b64_tr_b16 {v(SFW,2)}, {v(vSW0)}
                ds_read_b64_tr_b16 {v(SFW+2,2)}, {v(vSW1)}
                {lab1}:
                """)
            if i == 13 and not last:
                a(f"""
                s_add_u32 {s(sRdSt)}, {s(sRdSt)}, 1
                s_cmp_eq_u32 {s(sRdSt)}, 3
                s_cselect_b32 {s(sRdSt)}, 0, {s(sRdSt)}
                s_cselect_b32 {s(sDelta)}, {(-2*STAGE) & 0xffffffff}, {s(sK1)}
                s_cselect_b32 {s(sSDelta)}, {s(sK3)}, {s(sK2)}
                """)
                for r in [vXA, vXA + 1, vXA + 2, vXA + 3]:
                    a(f"v_add_u32 {v(r)}, {s(sDelta)}, {v(r)}")
            if i == 14 and not last:
                for r in [vWA, vWA + 1, vWA + 2, vWA + 3]:
                    a(f"v_add_u32 {v(r)}, {s(sDelta)}, {v(r)}")
            if i == 15 and not last:
                a(f"v_add_u32 {v(vSX)}, {s(sDelta)}, {v(vSX)}")
                for r in [vSW0, vSW1]:
                    a(f"v_add_u32 {v(r)}, {s(sSDelta)}, {v(r)}")
        if not last:
            a(f"s_waitcnt vmcnt({vm}) lgkmcnt(0)")
            if not Opt.no_bar: a("s_barrier")
            rd = reads(0, 0)
        else:
            a("s_waitcnt lgkmcnt(0)")
            rd = []
        d = dma_group() if (dma and not Opt.no_dma) else []
        for i, (ts, cs) in enumerate(order):
            a(mf(1, ts, cs, swap))
            if i < len(rd): a(rd[i])
            if i % 2 == 1 and i // 2 < len(d): a("\n".join(d[i // 2]))
        a(f"""
        s_and_b32 {s(sT0)}, {s(sC)}, 1
        s_cmp_lg_u32 {s(sT0)}, {s(sPar)}
        s_cbranch_scc1 {lab2}
        s_cmp_eq_u32 {s(sJT)}, 1
        s_cbranch_scc1 {lab3}
        v_mfma_f32_32x32x16_bf16 {v(SACC,16)}, {v(SFW,4)}, {v(SFX,4)}, {v(SACC,16)}
        s_branch {lab2}
        {lab3}:
        v_mfma_f32_32x32x16_bf16 {v(SACC,16)}, {v(SFX,4)}, {v(SFW,4)}, {v(SACC,16)}
        {lab2}:
        s_add_u32 {s(sC)}, {s(sC)}, 1
        """)
    for swap, lbl in [(False, "nloop"), (True, "vloop")]:
        a.label(f"{name}_{lbl}")
        chunk(swap, True, 6, False)
        a(f"""
        s_cmp_lt_u32 {s(sC)}, 13
        s_cbranch_scc1 {name}_{lbl}
        """)
        chunk(swap, False, 6, False)
        chunk(swap, False, 0, False)
        chunk(swap, False, 0, True)
        if not swap:
            a(f"s_branch {name}_epi")
    a.label(f"{name}_epi")
    stamp(a, 2)
    a(f"""
    s_lshr_b32 {s(sT0)}, {s(sW)}, 1          ; cn
    s_and_b32 {s(sT1)}, {s(sW)}, 1           ; tm
    s_lshl_b32 {s(sT1)}, {s(sT1)}, 1
    s_lshl2_add_u32 {s(sT1)}, {s(sRB)}, {s(sT1)}
    s_lshl_b32 {s(sBase)}, {s(sT0)}, 22
    s_lshl_b32 {s(sT2)}, {s(sT1)}, 16
    s_add_u32 {s(sBase)}, {s(sBase)}, {s(sT2)}
    s_lshl_b32 {s(sT2)}, {s(sHP)}, 12
    s_add_u32 {s(sBase)}, {s(sBase)}, {s(sT2)}
    s_lshl_b32 {s(sT2)}, {s(sHP)}, 19
    s_lshl_b32 {s(sT3)}, {s(sT1)}, 12
    s_add_u32 {s(sT2)}, {s(sT2)}, {s(sT3)}
    s_add_u32 {s(sT2)}, {s(sT2)}, {WS_KVB}
    s_and_b32 {s(sT3)}, {s(sT0)}, 1
    s_lshl_b32 {s(sT3)}, {s(sT3)}, 11
    s_add_u32 {s(sT2)}, {s(sT2)}, {s(sT3)}          ; V: +2048
    s_movk_i32 {s(sStrT)}, 4096
    s_movk_i32 {s(sStrC)}, 2048
    s_cmp_lt_u32 {s(sT0)}, 2
    s_cselect_b32 {s(sBase)}, {s(sBase)}, {s(sT2)}
    s_cselect_b32 {s(sStrT)}, 65536, {s(sStrT)}
    s_cselect_b32 {s(sStrC)}, {s(sStrC)}, 262144
    s_cselect_b32 {s(sScale)}, {hex(f2u(QSCALE))}, 1.0
    v_lshlrev_b32 {v(vSt)}, 9, {v(vG)}
    v_lshl_add_u32 {v(vSt)}, {v(vI)}, 4, {v(vSt)}
    v_lshlrev_b32 {v(vT)}, 4, {v(vLane)}
    """)
    PK = FX[0]
    n = 0
    for p in range(2):
        for q in range(2):
            if (p, q) == (0, 0): a(f"s_mov_b32 {s(sT2)}, {s(sBase)}")
            if (p, q) == (0, 1): a(f"s_add_u32 {s(sT2)}, {s(sBase)}, {s(sStrC)}")
            if (p, q) == (1, 0): a(f"s_add_u32 {s(sT2)}, {s(sBase)}, {s(sStrT)}")
            if (p, q) == (1, 1): a(f"s_add_u32 {s(sT2)}, {s(sT2)}, {s(sStrC)}")
            for half in range(2):
                A = ACC + 16 * (2 * p + half) + 8 * q; P = PK + 4 * n; n += 1
                for r in range(8):
                    a(f"v_mul_f32 {v(A+r)}, {s(sScale)}, {v(A+r)}")
                for r in range(4):
                    a(f"v_cvt_pk_bf16_f32 {v(P+r)}, {v(A+2*r)}, {v(A+2*r+1)}")
                a(f"buffer_store_dwordx4 {v(P,4)}, {v(vSt)}, {s(SWS,4)}, {s(sT2)} offen offset:{half*256}")
    if Opt.stamps: a("s_waitcnt vmcnt(0)")
    stamp(a, 3); rstamp(a, 5)
    stamp_out(a, 6, SWS, sW)
    RD = 28
    a(f"""
    s_cmp_eq_u32 {s(sJT)}, 3
    s_cbranch_scc1 {name}_end
    s_barrier
    s_lshl_b32 {s(sT0)}, {s(sW)}, 12
    v_add_u32 {v(vSt)}, {s(sT0)}, {v(vT)}
    """)
    for q in range(4):
        a(f"ds_write_b128 {v(vSt)}, {v(SACC+4*q,4)} offset:{q*1024}")
    a(f"""
    s_waitcnt lgkmcnt(0)
    s_barrier
    s_cmp_ge_u32 {s(sW)}, 2
    s_cbranch_scc1 {name}_end
    s_cmp_eq_u32 {s(sJT)}, 1
    s_cselect_b32 {s(sT0)}, 11, 10
    s_lshl_b32 {s(sT0)}, {s(sW)}, {s(sT0)}
    s_cmp_eq_u32 {s(sJT)}, 1
    s_movk_i32 {s(sT1)}, 2048
    s_cselect_b32 {s(sT1)}, 1024, {s(sT1)}
    v_add_u32 {v(vSt)}, {s(sT0)}, {v(vT)}
    v_add_u32 {v(vU)}, {s(sT1)}, {v(vSt)}
    """)
    RB = ACC
    for u in range(8):
        a(f"ds_read_b128 {v(RB+8*u,4)}, {v(vSt)} offset:{u*4096}")
        a(f"ds_read_b128 {v(RB+8*u+4,4)}, {v(vU)} offset:{u*4096}")
    a("s_waitcnt lgkmcnt(0)")
    for u in range(1, 8):
        for r in range(8):
            a(f"v_add_f32 {v(RB+r)}, {v(RB+r)}, {v(RB+8*u+r)}")
    a(f"""
    s_and_b32 {s(sT1)}, {s(sHP)}, 3
    s_lshl2_add_u32 {s(sT1)}, {s(sRB)}, {s(sT1)}     ; T
    s_cmp_eq_u32 {s(sJT)}, 2
    s_cbranch_scc1 {name}_gate
    """)
    for r in range(4):
        a(f"v_cvt_pk_bf16_f32 {v(RD+r)}, {v(RB+2*r)}, {v(RB+2*r+1)}")
    a(f"""
    s_lshl_b32 {s(sT1)}, {s(sT1)}, 12
    s_lshl_b32 {s(sT0)}, {s(sW)}, 10
    s_add_u32 {s(sT1)}, {s(sT1)}, {s(sT0)}
    s_lshl_b32 {s(sT0)}, {s(sJT)}, 11
    s_add_u32 {s(sT1)}, {s(sT1)}, {s(sT0)}
    s_add_u32 {s(sT1)}, {s(sT1)}, {WS_KVA}
    buffer_store_dwordx4 {v(RD,4)}, {v(vT)}, {s(SWS,4)}, {s(sT1)} offen
    s_branch {name}_end
    {name}_gate:
    s_cmp_lg_u32 {s(sW)}, 0
    s_cbranch_scc1 {name}_end
    v_mul_f32 {v(RD)}, {hex(f2u(-LOG2E))}, {v(RB)}
    v_exp_f32 {v(RD)}, {v(RD)}
    s_nop 0
    v_add_f32 {v(RD)}, 1.0, {v(RD)}
    v_rcp_f32 {v(RD)}, {v(RD)}
    v_lshlrev_b32 {v(vT)}, 2, {v(vLane)}
    s_lshl_b32 {s(sT1)}, {s(sT1)}, 7
    s_add_u32 {s(sT1)}, {s(sT1)}, {WS_G}
    s_mov_b32 exec_hi, 0
    buffer_store_dword {v(RD)}, {v(vT)}, {s(SWS,4)}, {s(sT1)} offen
    {name}_end:
    s_endpgm
    """)
    return head(name) + a.text() + kd(name, vgpr=256)

if __name__ == "__main__":
    txt = '.amdgcn_target "amdgcn-amd-amdhsa--gfx950"\n' + gen_k1("k1_kernel")
    bad = check_hazards(txt)
    print("hazards:", len(bad))
    open("k1.s", "w").write(txt)
```

```python
from gen2 import *

NEGBIG = 0xf149f2ca
P1 = "e2 PV1p x1 e3 SUM1p x2 e1 QK0 x3 e3 QK1 x4 e3 PV0 x5 e3 SUM0 x6 e1"

def att_slot(a, Sc, Sp, Oc, Op, Lc, Lp, Kn, Qn, Cn, Vp, Vc, ONES, IDX, extra, pattern=P1, skip=()):
    ops = {
        "PV1p": f"v_smfmac_f32_32x32x32_bf16 {v(Op,16)}, {v(Vp+4,4)}, {v(Sp+8,8)}, {v(IDX)}",
        "SUM1p": f"v_smfmac_f32_16x16x64_bf16 {v(Lp,4)}, {v(ONES,4)}, {v(Sp+8,8)}, {v(IDX)}",
        "QK0": f"v_mfma_f32_32x32x16_bf16 {v(Sp,16)}, {v(Kn,4)}, {v(Qn,4)}, {'0' if Cn is None else v(Cn,16)}",
        "QK1": f"v_mfma_f32_32x32x16_bf16 {v(Sp,16)}, {v(Kn+4,4)}, {v(Qn+4,4)}, {v(Sp,16)}",
        "PV0": f"v_smfmac_f32_32x32x32_bf16 {v(Oc,16)}, {v(Vc,4)}, {v(Sc,8)}, {v(IDX)}",
        "SUM0": f"v_smfmac_f32_16x16x64_bf16 {v(Lc,4)}, {v(ONES,4)}, {v(Sc,8)}, {v(IDX)}",
    }
    e = 0
    for tok in pattern.split():
        if tok[0] == "e":
            for _ in range(int(tok[1:])):
                a(f"v_exp_f32 {v(Sc+e)}, {v(Sc+e)}"); e += 1
        elif tok[0] == "x":
            for x in extra.get(tok, []): a(x)
        elif tok not in skip:
            a(ops[tok])
    assert e == 16

KVB_LDS = 0
KVA_LDS = 98304
K2_LDS = KVA_LDS + 2 * 16384

def gen_k2(name):
    a = Asm()
    SWS = 4
    sRB, sHP, sW, sT = 8, 9, 10, 11
    sT0, sT1, sT2, sT3 = 12, 13, 14, 15
    sKH = 16; sIt = 17; sSrc = 18; sDst = 19; sOoff = 20; sN = 21; sKV = 22; sI = 23; sPass = 24; sHead = 25
    sBig = 26
    vLane = 1; vT = 2; vU = 3; ONES = 4; IDX = 8; vL16 = 9; vRd = 10; vGate = 11; vQ = 12; vSt = 13; vM = 14; vX = 15
    QA = [16, 24]; QB = 32
    O = [40, 56]; L = [72, 76]
    S = [80, 96]; KF = [112, 120]; VF = [128, 136]
    CD = 144; CO = 160; CM = 176; CS = 192
    PK = 208
    a(f"""
    s_cmp_ge_u32 s2, 256
    s_cbranch_scc1 {name}_end
    s_load_dwordx2 {s(SWS,2)}, s[0:1], 88
    """)
    stamp(a, 0); rstamp(a, 5)
    decode_wg(a, sRB, sHP, sT0, sT1)
    srd(a, SWS, WS_SIZE)
    a(f"""
    v_lshrrev_b32 {v(vT)}, 6, v0
    v_and_b32 {v(vLane)}, 63, v0
    v_readfirstlane_b32 {s(sW)}, {v(vT)}
    v_lshlrev_b32 {v(vL16)}, 4, {v(vLane)}
    s_lshr_b32 {s(sKH)}, {s(sW)}, 2
    s_and_b32 {s(sT0)}, {s(sW)}, 3
    s_lshl2_add_u32 {s(sT)}, {s(sRB)}, {s(sT0)}
    s_lshl1_add_u32 {s(sHead)}, {s(sHP)}, {s(sKH)}
    s_waitcnt lgkmcnt(0)
    s_lshl_b32 {s(sT1)}, {s(sT)}, 5
    s_add_u32 {s(sT1)}, {s(sT1)}, {s(sHead)}
    s_lshl_b32 {s(sT1)}, {s(sT1)}, 11
    s_add_u32 {s(sT2)}, {s(sT1)}, {WS_QB}
    buffer_load_dwordx4 {v(QB,4)}, {v(vL16)}, {s(SWS,4)}, {s(sT2)} offen
    buffer_load_dwordx4 {v(QB+4,4)}, {v(vL16)}, {s(SWS,4)}, {s(sT2)} offen offset:1024
    """)
    for i in range(3):
        a(f"""
        s_mul_i32 {s(sT2)}, {s(sT0)}, 3
        s_add_u32 {s(sT2)}, {s(sT2)}, {i}
        s_lshl_b32 {s(sT3)}, {s(sT2)}, 12
        s_mul_i32 {s(sDst)}, {s(sKH)}, 49152
        s_add_u32 m0, {s(sDst)}, {s(sT3)}
        s_lshl2_add_u32 {s(sT2)}, {s(sRB)}, {s(sT2)}
        s_sub_i32 {s(sT2)}, {s(sT2)}, 8
        s_max_i32 {s(sT2)}, {s(sT2)}, 0
        s_lshl_b32 {s(sT3)}, {s(sHead)}, 6
        s_add_u32 {s(sT2)}, {s(sT2)}, {s(sT3)}
        s_lshl_b32 {s(sT2)}, {s(sT2)}, 12
        s_add_u32 {s(sT2)}, {s(sT2)}, {WS_KVB}
        """)
        for q in range(4):
            a(f"buffer_load_dwordx4 {v(vL16)}, {s(SWS,4)}, {s(sT2)} offen offset:{q*1024} lds")
    a(f"""
    buffer_load_dwordx4 {v(QA[0],4)}, {v(vL16)}, {s(SWS,4)}, {s(sT1)} offen
    buffer_load_dwordx4 {v(QA[0]+4,4)}, {v(vL16)}, {s(SWS,4)}, {s(sT1)} offen offset:1024
    s_xor_b32 {s(sT1)}, {s(sT1)}, 2048
    v_and_b32 {v(vQ)}, 31, {v(vLane)}
    buffer_load_dwordx4 {v(QA[1],4)}, {v(vL16)}, {s(SWS,4)}, {s(sT1)} offen
    buffer_load_dwordx4 {v(QA[1]+4,4)}, {v(vL16)}, {s(SWS,4)}, {s(sT1)} offen offset:1024
    v_lshlrev_b32 {v(vT)}, 2, {v(vQ)}
    s_lshl_b32 {s(sT2)}, {s(sT)}, 7
    s_add_u32 {s(sT2)}, {s(sT2)}, {WS_G}
    buffer_load_dword {v(vGate)}, {v(vT)}, {s(SWS,4)}, {s(sT2)} offen
    s_lshl_b32 {s(sSrc)}, {s(sKH)}, 17
    s_lshl_b32 {s(sT2)}, {s(sT0)}, 11
    s_add_u32 {s(sSrc)}, {s(sSrc)}, {s(sT2)}
    s_add_u32 {s(sSrc)}, {s(sSrc)}, {WS_KVA}
    s_lshl_b32 {s(sDst)}, {s(sW)}, 11
    s_add_u32 {s(sDst)}, {s(sDst)}, {KVA_LDS}
    """)
    def kva_dma(stage):
        return [f"s_add_u32 m0, {s(sDst)}, {stage*16384}" if stage else f"s_mov_b32 m0, {s(sDst)}",
                "s_nop 0",
                f"buffer_load_dwordx4 {v(vL16)}, {s(SWS,4)}, {s(sSrc)} offen lds",
                f"buffer_load_dwordx4 {v(vL16)}, {s(SWS,4)}, {s(sSrc)} offen offset:1024 lds",
                f"s_add_u32 {s(sSrc)}, {s(sSrc)}, 8192"]
    for st in range(2):
        a("\n".join(kva_dma(st)))
    a(f"""
    v_mov_b32 {v(IDX)}, 0xdddddddd
    v_and_b32 {v(vT)}, 7, {v(vLane)}
    v_mov_b32 {v(vU)}, 0x3f803f80
    v_cmp_eq_u32 vcc, 0, {v(vT)}
    v_cmp_eq_u32 {s(sT2,2)}, 4, {v(vT)}
    s_mov_b32 {s(sBig)}, {hex(NEGBIG)}
    v_cndmask_b32 {v(ONES)}, 0, {v(vU)}, vcc
    v_cndmask_b32 {v(ONES+1)}, 0, {v(vU)}, vcc
    v_cndmask_b32 {v(ONES+2)}, 0, {v(vU)}, {s(sT2,2)}
    v_cndmask_b32 {v(ONES+3)}, 0, {v(vU)}, {s(sT2,2)}
    ; t = q - 4h
    v_lshrrev_b32 {v(vT)}, 5, {v(vLane)}
    v_lshlrev_b32 {v(vT)}, 2, {v(vT)}
    v_sub_u32 {v(vT)}, {v(vQ)}, {v(vT)}
    v_mov_b32 {v(vU)}, {s(sBig)}
    """)
    for r in range(16):
        c = 8 * (r >> 2) + (r & 3)
        sp = "vcc" if r & 1 else s(sT2, 2)
        a(f"v_cmp_gt_i32 {sp}, {c}, {v(vT)}")
        a(f"v_mov_b32 {v(CM+r)}, 0")
        a(f"v_mov_b32 {v(O[0]+r)}, 0")
        a(f"v_cndmask_b32 {v(CD+r)}, 0, {v(vU)}, {sp}")
    a(f"""
    s_cmp_lt_u32 {s(sT)}, 8
    s_cselect_b32 {s(sT2)}, 0, 1.0
    """)
    for r in range(16):
        a(f"v_fma_f32 {v(CO+r)}, -{v(CD+r)}, {s(sT2)}, {v(vU)}")
    for r in range(4): a(f"v_mov_b32 {v(L[0]+r)}, 0")
    for r in range(8):
        a(f"v_mov_b32 {v(S[1]+8+r)}, 0"); a(f"v_mov_b32 {v(VF[1]+r)}, 0")
    a(f"""
    s_mul_i32 {s(sT2)}, {s(sKH)}, 49152
    s_lshl_b32 {s(sT3)}, {s(sT0)}, 12
    s_add_u32 {s(sT2)}, {s(sT2)}, {s(sT3)}
    v_add_u32 {v(vRd)}, {s(sT2)}, {v(vL16)}
    v_and_b32 {v(vT)}, 15, {v(vLane)}
    v_lshlrev_b32 {v(vSt)}, 4, {v(vT)}
    v_bfe_u32 {v(vT)}, {v(vLane)}, 4, 1
    v_lshl_add_u32 {v(vSt)}, {v(vT)}, 10, {v(vSt)}
    v_lshrrev_b32 {v(vT)}, 5, {v(vLane)}
    v_lshl_add_u32 {v(vSt)}, {v(vT)}, 8, {v(vSt)}
    s_waitcnt vmcnt(9)
    s_barrier
    """)
    stamp(a, 1)
    if Opt.stamps: a("s_waitcnt lgkmcnt(0)")
    def rdK(buf, off): return [f"ds_read_b128 {v(KF[buf],4)}, {v(vRd)} offset:{off}", f"ds_read_b128 {v(KF[buf]+4,4)}, {v(vRd)} offset:{off+1024}"]
    def rdV(buf, off): return [f"ds_read_b128 {v(VF[buf],4)}, {v(vRd)} offset:{off+2048}", f"ds_read_b128 {v(VF[buf]+4,4)}, {v(vRd)} offset:{off+3072}"]
    boff = lambda i: (8 - i) * 4096
    a("\n".join(rdK(0, boff(0)) + rdK(1, boff(1)) + rdV(0, boff(0))))
    a(f"""
    s_waitcnt lgkmcnt(4)
    v_mfma_f32_32x32x16_bf16 {v(S[0],16)}, {v(KF[0],4)}, {v(QB,4)}, {v(CD,16)}
    v_mfma_f32_32x32x16_bf16 {v(S[0],16)}, {v(KF[0]+4,4)}, {v(QB+4,4)}, {v(S[0],16)}
    s_nop 11
    """)
    for n in range(9):
        c = n & 1; p = c ^ 1
        ex = {}
        if n + 1 <= 8:
            lab = a.newlabel(name + "_cm")
            pre = []
            if n + 1 <= 7:
                pre = [f"s_cmp_lg_u32 {s(sT)}, {n}", f"s_cbranch_scc1 {lab}"] + [f"v_mov_b32 {v(CM+r)}, {s(sBig)}" for r in range(16)] + [f"{lab}:"]
            ex["x1"] = ["s_waitcnt lgkmcnt(0)"] + rdV(p, boff(n + 1))[:1]
            ex["x2"] = pre + rdV(p, boff(n + 1))[1:]
            if n + 2 <= 8:
                ex["x3"] = rdK(c, boff(n + 2))[:1]; ex["x4"] = rdK(c, boff(n + 2))[1:]
        else:
            ex["x1"] = ["s_waitcnt lgkmcnt(0)"]
        att_slot(a, S[c], S[p], O[0], O[0], L[0], L[0], KF[p], QB, CO if n + 1 == 8 else CM, VF[p], VF[c], ONES, IDX, ex,
                 skip=("QK0", "QK1") if n == 8 else ())
    a(f"""
    s_nop 1
    v_smfmac_f32_32x32x32_bf16 {v(O[0],16)}, {v(VF[0]+4,4)}, {v(S[0]+8,8)}, {v(IDX)}
    v_smfmac_f32_16x16x64_bf16 {v(L[0],4)}, {v(ONES,4)}, {v(S[0]+8,8)}, {v(IDX)}
    s_nop 11
    """)
    def check(lbl_slow, lbl_back):
        a(f"v_add_f32 {v(vT)}, |{v(O[0])}|, |{v(O[0]+1)}|")
        a(f"v_add_f32 {v(vU)}, |{v(O[0]+2)}|, |{v(O[0]+3)}|")
        for r in range(4, 16, 2):
            a(f"v_add_f32 {v(vT)}, |{v(O[0]+r)}|, {v(vT)}")
            a(f"v_add_f32 {v(vU)}, |{v(O[0]+r+1)}|, {v(vU)}")
        a(f"""
        v_add_f32 {v(vT)}, {v(vU)}, {v(vT)}
        v_mov_b32 {v(vU)}, {hex(f2u(2.0**100))}
        v_cmp_lt_f32 vcc, {v(vT)}, {v(vU)}
        v_cmp_lt_f32 {s(sT2,2)}, {v(L[0])}, {v(vU)}
        v_mov_b32 {v(vU)}, {hex(f2u(2.0**-30))}
        s_and_b64 vcc, vcc, {s(sT2,2)}
        v_cmp_gt_f32 {s(sT2,2)}, {v(L[0])}, {v(vU)}
        s_and_b64 vcc, vcc, {s(sT2,2)}
        s_cmp_eq_u64 vcc, -1
        s_cbranch_scc0 {lbl_slow}
        {lbl_back}:
        """)
    def finish(isB):
        a(f"""
        v_rcp_f32 {v(vT)}, {v(L[0])}
        s_lshl_b32 {s(sOoff)}, {s(sT)}, 6
        s_add_u32 {s(sOoff)}, {s(sOoff)}, {s(sHead)}
        s_lshl_b32 {s(sOoff)}, {s(sOoff)}, 11
        s_add_u32 {s(sOoff)}, {s(sOoff)}, {WS_O + (65536 if isB else 0)}
        """)
        if isB: a(f"v_sub_f32 {v(vU)}, 1.0, {v(vGate)}\nv_mul_f32 {v(vT)}, {v(vT)}, {v(vU)}")
        else: a(f"v_mul_f32 {v(vT)}, {v(vT)}, {v(vGate)}")
        for r in range(16): a(f"v_mul_f32 {v(O[0]+r)}, {v(O[0]+r)}, {v(vT)}")
        for r in range(8): a(f"v_cvt_pk_bf16_f32 {v(PK+r)}, {v(O[0]+2*r)}, {v(O[0]+2*r+1)}")
        a(f"buffer_store_dwordx4 {v(PK,4)}, {v(vSt)}, {s(SWS,4)}, {s(sOoff)} offen")
        a(f"buffer_store_dwordx4 {v(PK+4,4)}, {v(vSt)}, {s(SWS,4)}, {s(sOoff)} offen offset:512")
    a("s_waitcnt vmcnt(0)")
    check(f"{name}_slowB", f"{name}_backB")
    finish(True)
    stamp(a, 2)
    a(f"""
    s_lshl_b32 {s(sT2)}, {s(sKH)}, 13
    s_add_u32 {s(sT2)}, {s(sT2)}, {KVA_LDS}
    v_add_u32 {v(vRd)}, {s(sT2)}, {v(vL16)}
    s_barrier
    """)
    a("\n".join(rdK(0, 0) + rdV(0, 0)))
    for r in range(16):
        a(f"v_mov_b32 {v(O[0]+r)}, 0"); a(f"v_mov_b32 {v(O[1]+r)}, 0")
    for r in range(8):
        a(f"v_mov_b32 {v(L[0]+r)}, 0"); a(f"v_mov_b32 {v(S[1]+8+r)}, 0")
    a(f"""
    s_mov_b32 {s(sIt)}, 0
    s_waitcnt lgkmcnt(0)
    v_mfma_f32_32x32x16_bf16 {v(S[0],16)}, {v(KF[0],4)}, {v(QA[0],4)}, 0
    v_mfma_f32_32x32x16_bf16 {v(S[0],16)}, {v(KF[0]+4,4)}, {v(QA[0]+4,4)}, {v(S[0],16)}
    s_nop 11
    .p2align 6
    {name}_aloop:
    """)
    for j in range(4):
        b = j & 1; nb = b ^ 1
        jn = (j + 1) & 3
        off = (jn >> 1) * 16384 + (jn & 1) * 4096
        k = rdK(nb, off); vv = rdV(nb, off)
        exa = {"x1": [k[0]], "x2": [k[1]], "x3": [vv[0]], "x4": [vv[1]]}
        exb = {"x1": ["s_waitcnt lgkmcnt(0)"]}
        if b == 1:
            d = kva_dma(j >> 1)
            exa["x1"] = ["s_waitcnt vmcnt(0)", "s_barrier"] + exa["x1"]
            exa["x5"] = d[:3]; exa["x6"] = d[3:]
        if j == 3:
            exb["x5"] = [f"s_add_u32 {s(sIt)}, {s(sIt)}, 1"]; exb["x6"] = [f"s_cmp_lt_u32 {s(sIt)}, 8"]
        att_slot(a, S[0], S[1], O[0], O[1], L[0], L[1], KF[b], QA[1], None, VF[nb], VF[b], ONES, IDX, exa)
        att_slot(a, S[1], S[0], O[1], O[0], L[1], L[0], KF[nb], QA[0], None, VF[b], VF[b], ONES, IDX, exb)
    a(f"""
    s_cbranch_scc1 {name}_aloop
    s_nop 0
    v_smfmac_f32_32x32x32_bf16 {v(O[1],16)}, {v(VF[1]+4,4)}, {v(S[1]+8,8)}, {v(IDX)}
    v_smfmac_f32_16x16x64_bf16 {v(L[1],4)}, {v(ONES,4)}, {v(S[1]+8,8)}, {v(IDX)}
    """)
    stamp(a, 3)
    a(f"""
    s_mul_i32 {s(sT2)}, {s(sW)}, 5120
    v_add_u32 {v(vT)}, {s(sT2)}, {v(vL16)}
    s_xor_b32 {s(sT2)}, {s(sW)}, 4
    s_mul_i32 {s(sT2)}, {s(sT2)}, 5120
    v_add_u32 {v(vU)}, {s(sT2)}, {v(vL16)}
    s_nop 7
    """)
    for q in range(4): a(f"ds_write_b128 {v(vT)}, {v(O[1]+4*q,4)} offset:{q*1024}")
    a(f"ds_write_b32 {v(vT)}, {v(L[1])} offset:4096")
    a("s_waitcnt lgkmcnt(0)\ns_barrier")
    for q in range(4): a(f"ds_read_b128 {v(O[1]+4*q,4)}, {v(vU)} offset:{q*1024}")
    a(f"ds_read_b32 {v(L[1])}, {v(vU)} offset:4096")
    a("s_waitcnt lgkmcnt(0)")
    for r in range(16): a(f"v_add_f32 {v(O[0]+r)}, {v(O[0]+r)}, {v(O[1]+r)}")
    a(f"v_add_f32 {v(L[0])}, {v(L[0])}, {v(L[1])}")
    check(f"{name}_slowA", f"{name}_backA")
    finish(False)
    if Opt.stamps: a("s_waitcnt vmcnt(0)")
    stamp(a, 4); rstamp(a, 6)
    stamp_out(a, 7, SWS, sW, 1)
    a(f"""
    {name}_end:
    s_endpgm
    """)
    for isB in (True, False):
        tag = "B" if isB else "A"; Q = QB if isB else QA[0]
        a(f"{name}_slow{tag}:")
        a(f"s_mov_b32 {s(sPass)}, 0\nv_mov_b32 {v(vM)}, {s(sBig)}\nv_mov_b32 {v(vX)}, 0")
        if isB: a(f"s_min_u32 {s(sN)}, {s(sT)}, 8\ns_add_u32 {s(sN)}, {s(sN)}, 1")
        else: a(f"s_mov_b32 {s(sN)}, 64")
        a(f"{name}_sp{tag}:")
        if isB:
            a(f"""
            s_lshl_b32 {s(sKV)}, {s(sHead)}, 6
            s_add_u32 {s(sKV)}, {s(sKV)}, {s(sT)}
            s_lshl_b32 {s(sKV)}, {s(sKV)}, 12
            s_add_u32 {s(sKV)}, {s(sKV)}, {WS_KVB}
            """)
        else:
            a(f"s_mov_b32 {s(sKV)}, {WS_KVA}")
        a(f"s_mov_b32 {s(sI)}, 0")
        for r in range(16): a(f"v_mov_b32 {v(O[0]+r)}, 0")
        for r in range(4): a(f"v_mov_b32 {v(L[0]+r)}, 0")
        a(f"{name}_sl{tag}:")
        for q in range(2): a(f"buffer_load_dwordx4 {v(KF[0]+4*q,4)}, {v(vL16)}, {s(SWS,4)}, {s(sKV)} offen offset:{q*1024}")
        for q in range(2): a(f"buffer_load_dwordx4 {v(VF[0]+4*q,4)}, {v(vL16)}, {s(SWS,4)}, {s(sKV)} offen offset:{2048+q*1024}")
        if isB:
            a(f"""
            s_cmp_eq_u32 {s(sI)}, 0
            s_cselect_b32 {s(sT2)}, 1.0, 0
            s_cmp_eq_u32 {s(sI)}, 8
            s_cselect_b32 {s(sT3)}, 1.0, 0
            """)
            for r in range(16):
                a(f"v_fma_f32 {v(CS+r)}, {v(CD+r)}, {s(sT2)}, {v(vX)}")
                a(f"v_fma_f32 {v(CS+r)}, {v(CO+r)}, {s(sT3)}, {v(CS+r)}")
        else:
            for r in range(16): a(f"v_mov_b32 {v(CS+r)}, {v(vX)}")
        a(f"""
        s_waitcnt vmcnt(0)
        s_nop 1
        v_mfma_f32_32x32x16_bf16 {v(S[0],16)}, {v(KF[0],4)}, {v(Q,4)}, {v(CS,16)}
        v_mfma_f32_32x32x16_bf16 {v(S[0],16)}, {v(KF[0]+4,4)}, {v(Q+4,4)}, {v(S[0],16)}
        s_nop 15
        s_cmp_eq_u32 {s(sPass)}, 1
        s_cbranch_scc1 {name}_s1{tag}
        """)
        for r in range(0, 16, 2): a(f"v_max3_f32 {v(vM)}, {v(S[0]+r)}, {v(S[0]+r+1)}, {v(vM)}")
        a(f"s_branch {name}_s2{tag}\n{name}_s1{tag}:")
        for r in range(16): a(f"v_exp_f32 {v(S[0]+r)}, {v(S[0]+r)}")
        a(f"""
        s_nop 1
        v_smfmac_f32_32x32x32_bf16 {v(O[0],16)}, {v(VF[0],4)}, {v(S[0],8)}, {v(IDX)}
        v_smfmac_f32_32x32x32_bf16 {v(O[0],16)}, {v(VF[0]+4,4)}, {v(S[0]+8,8)}, {v(IDX)}
        v_smfmac_f32_16x16x64_bf16 {v(L[0],4)}, {v(ONES,4)}, {v(S[0],8)}, {v(IDX)}
        v_smfmac_f32_16x16x64_bf16 {v(L[0],4)}, {v(ONES,4)}, {v(S[0]+8,8)}, {v(IDX)}
        s_nop 15
        {name}_s2{tag}:
        s_add_u32 {s(sI)}, {s(sI)}, 1
        s_{'sub' if isB else 'add'}_u32 {s(sKV)}, {s(sKV)}, 4096
        s_cmp_lt_u32 {s(sI)}, {s(sN)}
        s_cbranch_scc1 {name}_sl{tag}
        s_cmp_eq_u32 {s(sPass)}, 1
        s_cbranch_scc1 {name}_back{tag}
        v_mov_b32 {v(vX)}, {v(vM)}
        s_nop 1
        v_permlane32_swap_b32 {v(vX)}, {v(vM)}
        s_nop 1
        v_max_f32 {v(vM)}, {v(vM)}, {v(vX)}
        v_sub_f32 {v(vX)}, 0, {v(vM)}
        s_mov_b32 {s(sPass)}, 1
        s_branch {name}_sp{tag}
        """)
    return head(name) + a.text() + kd(name, vgpr=256)

if __name__ == "__main__":
    txt = '.amdgcn_target "amdgcn-amd-amdhsa--gfx950"\n' + gen_k2("k2_kernel")
    bad = check_hazards(txt)
    print("hazards:", len(bad))
    open("k2.s", "w").write(txt)
```

```python
from gen2b import *

K3_LDS = 8 * 16384

def gen_k3(name):
    a = Asm()
    SWA, SWB, SWS, SO = 4, 8, 12, 16
    sRB, sCB, sW, sT = 20, 21, 22, 23
    sT0, sT1, sT2, sT3 = 24, 25, 26, 27
    sKH = 28; sOs = 29; sWs = 30; sDst = 31; sC = 32
    vLane = 1; vT = 2; vU = 3; vI = 4; vG = 5; vL16 = 6; vDW0 = 7; vDW1 = 8; vSt = 9
    vWA = 12
    FW = [24, 40]
    ACC = 56
    FO = 96
    a(f"""
    s_cmp_ge_u32 s2, 256
    s_cbranch_scc1 {name}_end
    s_load_dwordx2 {s(SWA,2)}, s[0:1], 32
    s_load_dwordx2 {s(SWB,2)}, s[0:1], 56
    s_load_dwordx2 {s(SWS,2)}, s[0:1], 88
    s_load_dwordx2 {s(SO,2)}, s[0:1], 72
    """)
    stamp(a, 0); rstamp(a, 4)
    srd(a, SWA, 0x200000); srd(a, SWB, 0x200000); srd(a, SWS, WS_SIZE); srd(a, SO, 0x400000)
    a(f"""
    s_and_b32 {s(sT0)}, s2, 3
    s_lshr_b32 {s(sT1)}, s2, 3
    s_and_b32 {s(sT2)}, {s(sT1)}, 3
    s_lshl2_add_u32 {s(sRB)}, {s(sT0)}, {s(sT2)}
    s_and_b32 {s(sT0)}, s2, 4
    s_lshr_b32 {s(sT1)}, {s(sT1)}, 2
    s_lshl1_add_u32 {s(sCB)}, {s(sT0)}, {s(sT1)}
    v_lshrrev_b32 {v(vT)}, 6, v0
    v_and_b32 {v(vLane)}, 63, v0
    v_readfirstlane_b32 {s(sW)}, {v(vT)}
    v_lshlrev_b32 {v(vL16)}, 4, {v(vLane)}
    v_lshrrev_b32 {v(vG)}, 4, {v(vLane)}
    v_and_b32 {v(vI)}, 15, v0
    s_lshr_b32 {s(sKH)}, {s(sW)}, 2
    s_and_b32 {s(sT0)}, {s(sW)}, 3
    s_lshl2_add_u32 {s(sT)}, {s(sRB)}, {s(sT0)}
    v_lshrrev_b32 {v(vT)}, 3, {v(vLane)}
    s_lshl_b32 {s(sT1)}, {s(sW)}, 4
    v_add_u32 {v(vT)}, {s(sT1)}, {v(vT)}
    v_and_b32 {v(vU)}, 7, {v(vLane)}
    v_lshlrev_b32 {v(vDW1)}, 1, {v(vG)}
    v_xor_b32 {v(vU)}, {v(vU)}, {v(vDW1)}
    v_lshlrev_b32 {v(vU)}, 4, {v(vU)}
    s_lshl_b32 {s(sT1)}, {s(sCB)}, 7
    v_add_u32 {v(vU)}, {s(sT1)}, {v(vU)}
    v_lshl_add_u32 {v(vDW0)}, {v(vT)}, 11, {v(vU)}
    v_add_u32 {v(vDW1)}, 0x4000, {v(vDW0)}
    s_lshl_b32 {s(sDst)}, {s(sW)}, 11
    s_lshl_b32 {s(sOs)}, {s(sT)}, 6
    s_add_u32 {s(sOs)}, {s(sOs)}, {s(sKH)}
    s_lshl_b32 {s(sOs)}, {s(sOs)}, 11
    s_add_u32 {s(sOs)}, {s(sOs)}, {WS_O}
    s_mov_b32 {s(sWs)}, 0
    s_waitcnt lgkmcnt(0)
    """)
    def wdma(srdr, stage):
        return [f"s_add_u32 m0, {s(sDst)}, {stage*16384}", "s_nop 0",
                f"buffer_load_dwordx4 {v(vDW0)}, {s(srdr,4)}, {s(sWs)} offen lds",
                f"s_add_u32 m0, {s(sDst)}, {stage*16384+1024}", "s_nop 0",
                f"buffer_load_dwordx4 {v(vDW1)}, {s(srdr,4)}, {s(sWs)} offen lds",
                f"s_add_u32 {s(sWs)}, {s(sWs)}, {128*2048}"]
    def oload(slot, ks):
        r = FO + 16 * slot + 8 * ks
        return [f"buffer_load_dwordx4 {v(r,4)}, {v(vL16)}, {s(SWS,4)}, {s(sOs)} offen",
                f"buffer_load_dwordx4 {v(r+4,4)}, {v(vL16)}, {s(SWS,4)}, {s(sOs)} offen offset:1024",
                f"s_add_u32 {s(sOs)}, {s(sOs)}, 4096"]
    log = []
    def emit(ops, tag):
        for o in ops:
            a(o)
            if o.startswith("buffer_"): log.append(tag)
    def waitfor(tags):
        last = max(i for i, t in enumerate(log) if t in tags)
        return len(log) - 1 - last
    for c in range(4):
        emit(wdma(SWA, c), ("W", c))
        emit(oload(c, 0), ("O", c, 0)); emit(oload(c, 1), ("O", c, 1))
    for c in range(4, 8):
        emit(wdma(SWA, c), ("W", c))
    a(f"""
    s_mov_b32 {s(sWs)}, 0
    ;   (row>>1)&3 = 2(G&1) + (i>>3)
    v_lshrrev_b32 {v(vT)}, 1, {v(vG)}
    v_lshlrev_b32 {v(vT)}, 4, {v(vT)}
    v_and_b32 {v(vU)}, 1, {v(vG)}
    v_lshl_add_u32 {v(vT)}, {v(vU)}, 2, {v(vT)}
    v_lshrrev_b32 {v(vSt)}, 2, {v(vI)}
    v_add_u32 {v(vT)}, {v(vT)}, {v(vSt)}
    v_lshlrev_b32 {v(vU)}, 6, {v(vU)}
    v_lshrrev_b32 {v(vSt)}, 3, {v(vI)}
    v_lshl_or_b32 {v(vU)}, {v(vSt)}, 5, {v(vU)}
    v_and_b32 {v(vSt)}, 3, {v(vI)}
    v_lshl_or_b32 {v(vU)}, {v(vSt)}, 3, {v(vU)}
    v_lshl_add_u32 {v(vWA)}, {v(vT)}, 7, {v(vU)}
    s_lshl_b32 {s(sT1)}, {s(sKH)}, 12
    v_add_u32 {v(vWA)}, {s(sT1)}, {v(vWA)}
    v_xor_b32 {v(vWA+1)}, 32, {v(vWA)}
    v_xor_b32 {v(vWA+2)}, 64, {v(vWA)}
    v_xor_b32 {v(vWA+3)}, 0x60, {v(vWA)}
    """)
    for i in range(4): a(f"v_add_u32 {v(vWA+4+i)}, 0x10000, {v(vWA+i)}")
    for r in range(32): a(f"v_mov_b32 {v(ACC+r)}, 0")
    def wreads(b, c, ks):
        st = c & 7; base = vWA + (4 if st >= 4 else 0); off = (st & 3) * 16384 + ks * 8192
        out = []
        for cs in range(4):
            out += [f"ds_read_b64_tr_b16 {v(FW[b]+4*cs,2)}, {v(base+cs)} offset:{off}",
                    f"ds_read_b64_tr_b16 {v(FW[b]+4*cs+2,2)}, {v(base+cs)} offset:{off+1024}"]
        return out
    a(f"s_waitcnt vmcnt({waitfor([('W',0)])})\ns_barrier")
    stamp(a, 1)
    if Opt.stamps: a("s_waitcnt lgkmcnt(0)")
    a("\n".join(wreads(0, 0, 0)))
    order = [(0, 0), (1, 0), (1, 1), (0, 1), (0, 2), (1, 2), (1, 3), (0, 3)]
    for c in range(16):
        for ks in range(2):
            b = ks
            fill = {}
            post = []
            if ks == 0:
                rd = wreads(1, c, 1)
                a(f"s_waitcnt vmcnt({waitfor([('O',c,0)])})")
            else:
                if c < 15:
                    a(f"s_waitcnt vmcnt({waitfor([('W',c+1),('O',c,1)])}) lgkmcnt(0)\ns_barrier")
                    rd = wreads(0, c + 1, 0)
                else:
                    a(f"s_waitcnt vmcnt(0) lgkmcnt(0)")
                    rd = []
            for i, (th, cs) in enumerate(order):
                if ks == 0 and i % 2 == 0 and i < 8:
                    a(f"s_waitcnt lgkmcnt({8 - 2 * (i // 2 + 1) + i})")
                a(f"v_mfma_f32_16x16x32_bf16 {v(ACC+16*th+4*cs,4)}, {v(FW[b]+4*cs,4)}, {v(FO+16*(c&3)+8*ks+4*th,4)}, {v(ACC+16*th+4*cs,4)}")
                if i < len(rd): a(rd[i])
                if ks == 1 and i == 3 and c < 8: emit(wdma(SWB, c), ("W", c + 8))
            if c + 4 < 16: emit(oload(c & 3, ks), ("O", c + 4, ks))
    stamp(a, 2)
    a(f"""
    s_barrier
    s_lshl_b32 {s(sT1)}, {s(sW)}, 12
    v_add_u32 {v(vT)}, {s(sT1)}, {v(vL16)}
    s_xor_b32 {s(sT1)}, {s(sT1)}, 16384
    v_add_u32 {v(vU)}, {s(sT1)}, {v(vL16)}
    s_nop 4
    s_cmp_eq_u32 {s(sKH)}, 0
    s_cbranch_scc1 {name}_k0
    """)
    for q in range(4): a(f"ds_write_b128 {v(vT)}, {v(ACC+4*q,4)} offset:{q*1024}")
    a("s_waitcnt lgkmcnt(0)")
    for r in range(16): a(f"v_mov_b32 {v(ACC+r)}, {v(ACC+16+r)}")
    a(f"s_branch {name}_k1\n{name}_k0:")
    for q in range(4): a(f"ds_write_b128 {v(vT)}, {v(ACC+16+4*q,4)} offset:{q*1024}")
    a(f"{name}_k1:\ns_waitcnt lgkmcnt(0)\ns_barrier")
    for q in range(4): a(f"ds_read_b128 {v(ACC+16+4*q,4)}, {v(vU)} offset:{q*1024}")
    a(f"""
    s_lshl_b32 {s(sT1)}, {s(sT)}, 5
    s_lshl_b32 {s(sT2)}, {s(sKH)}, 4
    s_add_u32 {s(sT1)}, {s(sT1)}, {s(sT2)}
    s_lshl_b32 {s(sT1)}, {s(sT1)}, 11
    s_lshl_b32 {s(sT2)}, {s(sCB)}, 7
    s_add_u32 {s(sT1)}, {s(sT1)}, {s(sT2)}
    v_lshlrev_b32 {v(vSt)}, 11, {v(vI)}
    v_lshl_add_u32 {v(vSt)}, {v(vG)}, 3, {v(vSt)}
    s_waitcnt lgkmcnt(0)
    """)
    for r in range(16): a(f"v_add_f32 {v(ACC+r)}, {v(ACC+r)}, {v(ACC+16+r)}")
    for r in range(8): a(f"v_cvt_pk_bf16_f32 {v(FW[0]+r)}, {v(ACC+2*r)}, {v(ACC+2*r+1)}")
    for cs in range(4): a(f"buffer_store_dwordx2 {v(FW[0]+2*cs,2)}, {v(vSt)}, {s(SO,4)}, {s(sT1)} offen offset:{cs*32}")
    if Opt.stamps: a("s_waitcnt vmcnt(0)")
    stamp(a, 3); rstamp(a, 5)
    stamp_out(a, 6, SWS, sW, 2)
    a(f"""
    {name}_end:
    s_endpgm
    """)
    return head(name) + a.text() + kd(name, vgpr=256)

HDR = open("gated_mix__grouped_kv_mqa__sliding_block__prompt.s.ref").read().split("; Override launch")[0] if __name__ == "__main__" else ""
def full():
    return '.amdgcn_target "amdgcn-amd-amdhsa--gfx950"\n' + gen_k1("k1_kernel") + gen_k2("k2_kernel") + gen_k3("k3_kernel")

if __name__ == "__main__":
    txt = full()
    bad = check_hazards(txt)
    print("hazards:", len(bad))
    launch = f"; @launch kernel=k1_kernel grid=(256,1,1) block=(512,1,1) lds={K1_LDS}\n; @launch kernel=k2_kernel grid=(256,1,1) block=(512,1,1) lds={K2_LDS}\n; @launch kernel=k3_kernel grid=(256,1,1) block=(512,1,1) lds={K3_LDS}\n"
    open("gated_mix__grouped_kv_mqa__sliding_block__prompt.s", "w").write(HDR + launch + txt)
```

```python
import math, struct, sys
from asmlib import *

NAME = "gated_mix__grouped_kv_mqa__sliding_block__prompt_kernel"
WS_KVB = 0
WS_O = 8 << 20
WS_KVA = 16 << 20
WS_G = WS_KVA + (256 << 10)
WS_FS = WS_KVA + (512 << 10)
WS_FKV = WS_FS + 4096
WS_FO = WS_FKV + 32768
WS_X = WS_FO + 32768
WS_STAMP = 31 << 20
WS_SIZE = 32 << 20
def f2u(x): return struct.unpack("<I", struct.pack("<f", x))[0]
LOG2E = math.log2(math.e)
QSCALE = LOG2E / math.sqrt(32.0)
NEGBIG = 0xf149f2ca
LDS_BYTES = 163840
STAGE = 49152
SIDE0 = 3 * STAGE
KVA_LDS = 98304
Q_LDS = 131072
SCR_LDS = 159744

class Opt:
    stamps = False
    pf = 1
    stop = 99

P1 = "e2 PV1p x1 e3 SUM1p x2 e1 QK0 x3 e3 QK1 x4 e3 PV0 x5 e3 SUM0 x6 e1"

SX, SW, SSD, SG, SWS, SWA, SWB, SO = 4, 8, 12, 16, 20, 24, 28, 32
sRB, sHP, sW, sNonce = 36, 37, 38, 39
sT0, sT1, sT2, sT3 = 40, 41, 42, 43
sKH, sT, sHead, sBig = 44, 45, 46, 47
sP0 = 48
ST0 = 64
sTmpQ = 96
sSpin = 100
SPIN_MAX = 1 << 20

def gen():
    a = Asm(); N = "K"
    def stamp(i):
        if Opt.stamps: a(f"s_memtime s[{ST0+2*i}:{ST0+1+2*i}]" + ("\ns_waitcnt lgkmcnt(0)" if i else ""))
    def spin(lbl_ok):
        return f"s_add_u32 {s(sSpin)}, {s(sSpin)}, 1\ns_cmp_gt_u32 {s(sSpin)}, {SPIN_MAX}\ns_cbranch_scc1 {lbl_ok}"
    def rstamp(i):
        if Opt.stamps: a(f"s_memrealtime s[{ST0+2*i}:{ST0+1+2*i}]")
    def srd(r, size): a(f"s_mov_b32 {s(r+2)}, {hex(size)}\ns_mov_b32 {s(r+3)}, 0x20000")
    NST = 12
    vLane, vI, vG, vL16, vT, vU, vX2, vDummy = 1, 2, 3, 4, 5, 6, 7, 255

    a(f"""
    s_cmp_ge_u32 s2, 256
    s_cbranch_scc1 {N}_end
    s_load_dwordx2 {s(SWS,2)}, s[0:1], 88
    s_load_dwordx2 {s(SX,2)}, s[0:1], 0
    s_load_dwordx2 {s(SW,2)}, s[0:1], 8
    s_load_dwordx2 {s(sT2,2)}, s[0:1], 48
    s_load_dwordx4 {s(sTmpQ,4)}, s[0:1], 16
    s_load_dwordx2 {s(SG,2)}, s[0:1], 64
    s_load_dwordx2 {s(SWA,2)}, s[0:1], 32
    s_load_dwordx2 {s(SWB,2)}, s[0:1], 56
    s_load_dwordx2 {s(SO,2)}, s[0:1], 72
    """)
    stamp(0); rstamp(NST)
    a(f"""
    s_and_b32 {s(sT0)}, s2, 1
    s_lshl_b32 {s(sT0)}, {s(sT0)}, 3
    s_lshr_b32 {s(sT1)}, s2, 3
    s_and_b32 {s(sT1)}, {s(sT1)}, 7
    s_add_u32 {s(sRB)}, {s(sT0)}, {s(sT1)}
    s_and_b32 {s(sT0)}, s2, 6
    s_lshl_b32 {s(sT0)}, {s(sT0)}, 1
    s_lshr_b32 {s(sT1)}, s2, 6
    s_add_u32 {s(sHP)}, {s(sT0)}, {s(sT1)}
    v_lshrrev_b32 {v(vT)}, 6, v0
    v_and_b32 {v(vLane)}, 63, v0
    v_readfirstlane_b32 {s(sW)}, {v(vT)}
    v_and_b32 {v(vI)}, 15, v0
    v_lshrrev_b32 {v(vG)}, 4, {v(vLane)}
    v_lshlrev_b32 {v(vL16)}, 4, {v(vLane)}
    """)
    srd(SX, 0x400000); srd(SSD, 0x10000); srd(SG, 0x800); srd(SWS, WS_SIZE); srd(SWA, 0x200000); srd(SWB, 0x200000); srd(SO, 0x400000)
    a(f"""
    s_mov_b32 {s(SW+3)}, 0x20000
    s_mov_b32 {s(sBig)}, {hex(NEGBIG)}
    s_mov_b32 {s(sSpin)}, 0
    s_lshr_b32 {s(sKH)}, {s(sW)}, 2
    s_and_b32 {s(sT0)}, {s(sW)}, 3
    s_lshl2_add_u32 {s(sT)}, {s(sRB)}, {s(sT0)}
    s_lshl1_add_u32 {s(sHead)}, {s(sHP)}, {s(sKH)}
    s_cmp_eq_u32 {s(sKH)}, 0
    s_cbranch_scc1 {N}_compute
    """)
    sJ, sRS, sKx, sKw, sRS16, sTy, sPriv, sXd, sWd, sSk, sSrc, sDst = range(sP0, sP0 + 12)
    vDX = 8
    vDW = 12
    vSX = 14; vSG = 15; vSR = 16; vSt = 17
    XF = 20
    GF = 52
    WF = 84
    SA = 100
    RB = 112
    log = []
    def emit(ops, tag=None):
        for o in ops:
            a(o)
            if o.startswith("buffer_") or o.startswith("global_"): log.append(tag)
    def vm(tags):
        last = max(i for i, t in enumerate(log) if t in tags)
        n = len(log) - 1 - last
        assert n <= 63
        return n
    a(f"""
    s_mov_b32 {s(sJ)}, {s(sT0)}
    s_lshr_b32 {s(sTy)}, {s(sHP)}, 3
    ; x dma offsets
    s_lshl_b32 {s(sT1)}, {s(sRB)}, 7
    s_lshl_b32 {s(sT0)}, {s(sJ)}, 5
    s_add_u32 {s(sT1)}, {s(sT1)}, {s(sT0)}
    v_lshrrev_b32 {v(vT)}, 3, {v(vLane)}
    v_add_u32 {v(vU)}, {s(sT1)}, {v(vT)}
    v_lshlrev_b32 {v(vU)}, 11, {v(vU)}
    v_and_b32 {v(vX2)}, 7, {v(vLane)}
    v_xor_b32 {v(vDX)}, {v(vX2)}, {v(vG)}
    v_lshl_add_u32 {v(vDX)}, {v(vDX)}, 4, {v(vU)}
    v_xor_b32 {v(vDX+1)}, 64, {v(vDX)}
    v_xor_b32 {v(vDX+2)}, 0x60, {v(vDX)}
    v_xor_b32 {v(vDX+3)}, 0x20, {v(vDX)}
    v_add_u32 {v(vDX+1)}, 0x4000, {v(vDX+1)}
    v_add_u32 {v(vDX+2)}, 0x8000, {v(vDX+2)}
    v_add_u32 {v(vDX+3)}, 0xc000, {v(vDX+3)}
    ; W dma offsets
    s_movk_i32 {s(sRS)}, 6144
    s_mov_b32 {s(SW+2)}, 0x600000
    s_sub_u32 {s(sT0)}, {s(sJ)}, 1
    s_lshl_b32 {s(sT0)}, {s(sT0)}, 11
    s_cmp_eq_u32 {s(sJ)}, 0
    s_cselect_b32 {s(sRS)}, 2048, {s(sRS)}
    s_cselect_b32 {s(SW+2)}, 0x200000, {s(SW+2)}
    s_cselect_b32 {s(sT0)}, 0, {s(sT0)}
    s_lshl_b32 {s(sT1)}, {s(sHP)}, 7
    s_add_u32 {s(sT0)}, {s(sT0)}, {s(sT1)}
    s_lshl_b32 {s(sRS16)}, {s(sRS)}, 4
    v_mul_lo_u32 {v(vT)}, {v(vT)}, {s(sRS)}
    v_and_b32 {v(vU)}, 1, {v(vG)}
    v_lshlrev_b32 {v(vU)}, 1, {v(vU)}
    v_xor_b32 {v(vU)}, {v(vU)}, {v(vX2)}
    v_lshl_add_u32 {v(vDW)}, {v(vU)}, 4, {v(vT)}
    v_add_u32 {v(vDW)}, {s(sT0)}, {v(vDW)}
    s_lshl_b32 {s(sT1)}, {s(sRS)}, 3
    v_xor_b32 {v(vDW+1)}, 64, {v(vDW)}
    v_add_u32 {v(vDW+1)}, {s(sT1)}, {v(vDW+1)}
    s_lshl_b32 {s(sXd)}, {s(sJ)}, 12
    s_lshl_b32 {s(sWd)}, {s(sJ)}, 13
    s_add_u32 {s(sWd)}, {s(sWd)}, 16384
    s_add_u32 {s(sPriv)}, {s(sXd)}, {SIDE0}
    s_mov_b32 {s(sKx)}, 0
    s_mov_b32 {s(sKw)}, 0
    s_waitcnt lgkmcnt(0)
    s_load_dword {s(sNonce)}, {s(SWS,2)}, {WS_X & 0xfffff}
    """.replace(f"s_load_dword {s(sNonce)}, {s(SWS,2)}, {WS_X & 0xfffff}", f"s_mov_b32 {s(sT0)}, {WS_X}\ns_load_dword {s(sNonce)}, {s(SWS,2)}, {s(sT0)}"))
    a(f"""
    s_cmp_eq_u32 {s(sJ)}, 0
    s_cselect_b32 {s(SW)}, {s(SW)}, {s(sT2)}
    s_cselect_b32 {s(SW+1)}, {s(SW+1)}, {s(sT3)}
    s_cmp_eq_u32 {s(sTy)}, 0
    s_cselect_b32 {s(SSD)}, {s(sTmpQ)}, {s(sTmpQ+2)}
    s_cselect_b32 {s(SSD+1)}, {s(sTmpQ+1)}, {s(sTmpQ+3)}
    """)
    def chunk_dma(c):
        st = (c % 3) * STAGE
        ops = []
        for i in range(4):
            ops += [f"s_add_u32 m0, {s(sXd)}, {st + i*1024}", "s_nop 0",
                    f"buffer_load_dwordx4 {v(vDX+i)}, {s(SX,4)}, {s(sKx)} offen lds"]
            ops += [f"s_add_u32 m0, {s(sWd)}, {st + 2*i*1024}", "s_nop 0",
                    f"buffer_load_dwordx4 {v(vDW)}, {s(SW,4)}, {s(sKw)} offen lds",
                    f"s_add_u32 m0, {s(sWd)}, {st + (2*i+1)*1024}", "s_nop 0",
                    f"buffer_load_dwordx4 {v(vDW+1)}, {s(SW,4)}, {s(sKw)} offen lds",
                    f"s_add_u32 {s(sKw)}, {s(sKw)}, {s(sRS16)}"]
        ops += [f"s_add_u32 {s(sKx)}, {s(sKx)}, 128"]
        return ops
    for c in range(2): emit(chunk_dma(c), ("C", c))
    a(f"""
    s_and_b32 {s(sT0)}, {s(sHP)}, 7
    s_lshl_b32 {s(sT0)}, {s(sT0)}, 4
    s_lshl_b32 {s(sT1)}, {s(sRB)}, 7
    s_add_u32 {s(sT0)}, {s(sT0)}, {s(sT1)}
    v_add_u32 {v(vT)}, {s(sT0)}, {v(vI)}
    v_lshlrev_b32 {v(vSG)}, 4, {v(vG)}
    s_lshl_b32 {s(sT1)}, {s(sJ)}, 9
    v_add_u32 {v(vSG)}, {s(sT1)}, {v(vSG)}
    v_lshl_add_u32 {v(vSX)}, {v(vT)}, 11, {v(vSG)}
    s_lshl_b32 {s(sSk)}, {s(sJ)}, 14
    """)
    def piece_dma():
        return [f"s_mov_b32 m0, {s(sPriv)}", "s_nop 0"] + \
               [f"buffer_load_dwordx4 {v(vL16)}, {s(SSD,4)}, {s(sSk)} offen offset:{q*1024} lds" for q in range(4)] + \
               [f"s_add_u32 {s(sSk)}, {s(sSk)}, 4096"]
    emit(piece_dma(), ("P", 0))
    emit([f"buffer_load_dwordx4 {v(XF+4*q,4)}, {v(vSX)}, {s(SX,4)}, 0 offen offset:{64*q}" for q in range(8)], "XF")
    emit([f"buffer_load_dwordx4 {v(GF+4*q,4)}, {v(vSG)}, {s(SG,4)}, 0 offen offset:{64*q}" for q in range(8)], "XF")
    emit(chunk_dma(2), ("C", 2))
    a("s_barrier")
    a(f"""
    v_lshrrev_b32 {v(vT)}, 2, {v(vI)}
    v_lshl_add_u32 {v(vT)}, {v(vG)}, 3, {v(vT)}
    v_and_b32 {v(vU)}, 3, {v(vI)}
    v_lshlrev_b32 {v(vU)}, 3, {v(vU)}
    v_lshl_add_u32 {v(vSR)}, {v(vT)}, 6, {v(vU)}
    v_add_u32 {v(vSR)}, {s(sPriv)}, {v(vSR)}
    """)
    for r in range(12): a(f"v_mov_b32 {v(SA+r)}, 0")
    a(f"""
    s_waitcnt lgkmcnt(0)
    s_mul_i32 {s(sNonce)}, {s(sNonce)}, 0x9E3779B1
    s_add_u32 {s(sNonce)}, {s(sNonce)}, 0x7F4A7C15
    """)
    a(f"s_waitcnt vmcnt({vm([('C',0)])})\ns_barrier")
    def side_piece(p):
        a(f"s_waitcnt vmcnt({vm([('P',p),'XF'])})")
        for sp in range(2):
            for cs in range(2):
                r = WF + 8 * sp + 4 * cs
                a(f"ds_read_b64_tr_b16 {v(r,2)}, {v(vSR)} offset:{sp*2048 + cs*32}")
                a(f"ds_read_b64_tr_b16 {v(r+2,2)}, {v(vSR)} offset:{sp*2048 + cs*32 + 256}")
        a("s_waitcnt lgkmcnt(0)")
        if p < 3: emit(piece_dma(), ("P", p + 1))
        lv = a.newlabel(N + "_sv"); le = a.newlabel(N + "_se")
        a(f"s_cmp_eq_u32 {s(sTy)}, 1\ns_cbranch_scc1 {lv}")
        for sp in range(2):
            x = XF + 4 * (2 * p + sp); g = GF + 4 * (2 * p + sp)
            for cs in range(2):
                a(f"v_mfma_f32_16x16x32_bf16 {v(SA+4*cs,4)}, {v(WF+8*sp+4*cs,4)}, {v(x,4)}, {v(SA+4*cs,4)}")
            a(f"v_mfma_f32_16x16x32_bf16 {v(SA+8,4)}, {v(g,4)}, {v(x,4)}, {v(SA+8,4)}")
        a(f"s_branch {le}\n{lv}:")
        for sp in range(2):
            x = XF + 4 * (2 * p + sp)
            for cs in range(2):
                a(f"v_mfma_f32_16x16x32_bf16 {v(SA+4*cs,4)}, {v(x,4)}, {v(WF+8*sp+4*cs,4)}, {v(SA+4*cs,4)}")
        a(f"{le}:")
    def kva_dma(stage):
        return [f"s_add_u32 m0, {s(sDst)}, {stage*16384}", "s_nop 0",
                f"buffer_load_dwordx4 {v(vL16)}, {s(SWS,4)}, {s(sSrc)} offen sc1 lds",
                f"buffer_load_dwordx4 {v(vL16)}, {s(SWS,4)}, {s(sSrc)} offen offset:1024 sc1 lds",
                f"s_add_u32 {s(sSrc)}, {s(sSrc)}, 8192"]
    for c in range(16):
        if c in (1, 3, 5, 7): side_piece((c - 1) // 2)
        if c == 7:
            a(f"v_add_u32 {v(vSt)}, {s(sPriv)}, {v(vL16)}\ns_nop 7")
            for q in range(3): a(f"ds_write_b128 {v(vSt)}, {v(SA+4*q,4)} offset:{q*1024}")
            a("s_waitcnt lgkmcnt(0)")
        if c == 8:
            lab = a.newlabel(N + "_nr"); lv = a.newlabel(N + "_pv"); le = a.newlabel(N + "_pe")
            a(f"s_cmp_lg_u32 {s(sJ)}, 0\ns_cbranch_scc1 {lab}")
            for u in range(1, 4):
                for q in range(3): a(f"ds_read_b128 {v(RB+12*u+4*q,4)}, {v(vSt)} offset:{u*4096+q*1024}")
            a(f"""
            s_and_b32 {s(sT0)}, {s(sHP)}, 7
            s_lshl_b32 {s(sT1)}, {s(sRB)}, 3
            s_add_u32 {s(sT0)}, {s(sT0)}, {s(sT1)}
            s_lshr_b32 {s(sT1)}, {s(sT0)}, 1
            s_lshl_b32 {s(sT1)}, {s(sT1)}, 12
            s_add_u32 {s(sT1)}, {s(sT1)}, {WS_KVA}
            s_and_b32 {s(sT2)}, {s(sT0)}, 1
            s_waitcnt lgkmcnt(0)
            """)
            for u in range(1, 4):
                for r in range(12): a(f"v_add_f32 {v(SA+r)}, {v(SA+r)}, {v(RB+12*u+r)}")
            a(f"s_cmp_eq_u32 {s(sTy)}, 1\ns_cbranch_scc1 {lv}")
            for r in range(8): a(f"v_mul_f32 {v(SA+r)}, {hex(f2u(QSCALE))}, {v(SA+r)}")
            for r in range(4): a(f"v_cvt_pk_bf16_f32 {v(RB+r)}, {v(SA+2*r)}, {v(SA+2*r+1)}")
            a(f"""
            v_mul_f32 {v(SA+8)}, {hex(f2u(-LOG2E))}, {v(SA+8)}
            v_exp_f32 {v(SA+8)}, {v(SA+8)}
            v_lshlrev_b32 {v(vT)}, 9, {v(vG)}
            v_lshl_add_u32 {v(vT)}, {v(vI)}, 4, {v(vT)}
            v_add_f32 {v(SA+8)}, 1.0, {v(SA+8)}
            v_rcp_f32 {v(SA+8)}, {v(SA+8)}
            s_lshl_b32 {s(sT2)}, {s(sT2)}, 8
            s_add_u32 {s(sT1)}, {s(sT1)}, {s(sT2)}
            buffer_store_dwordx4 {v(RB,4)}, {v(vT)}, {s(SWS,4)}, {s(sT1)} offen sc1
            v_lshlrev_b32 {v(vT)}, 2, {v(vI)}
            s_lshl_b32 {s(sT0)}, {s(sT0)}, 6
            s_add_u32 {s(sT0)}, {s(sT0)}, {WS_G}
            s_mov_b64 exec, 0xffff
            buffer_store_dword {v(SA+8)}, {v(vT)}, {s(SWS,4)}, {s(sT0)} offen sc1
            s_mov_b64 exec, -1
            s_branch {le}
            {lv}:
            """)
            for r in range(4): a(f"v_cvt_pk_bf16_f32 {v(RB+r)}, {v(SA+2*r)}, {v(SA+2*r+1)}")
            a(f"""
            v_lshrrev_b32 {v(vT)}, 1, {v(vG)}
            v_lshlrev_b32 {v(vT)}, 9, {v(vT)}
            v_lshl_add_u32 {v(vT)}, {v(vI)}, 4, {v(vT)}
            v_and_b32 {v(vU)}, 1, {v(vG)}
            v_lshl_add_u32 {v(vT)}, {v(vU)}, 3, {v(vT)}
            s_lshl_b32 {s(sT2)}, {s(sT2)}, 10
            s_add_u32 {s(sT1)}, {s(sT1)}, {s(sT2)}
            buffer_store_dwordx2 {v(RB,2)}, {v(vT)}, {s(SWS,4)}, {s(sT1)} offen offset:2048 sc1
            buffer_store_dwordx2 {v(RB+2,2)}, {v(vT)}, {s(SWS,4)}, {s(sT1)} offen offset:2304 sc1
            {le}:
            {lab}:
            """)
        if c < 15: a(f"s_waitcnt vmcnt({vm([('C',c+1)])})")
        if c == 10:
            lab = a.newlabel(N + "_nf")
            a(f"""
            s_cmp_lg_u32 {s(sJ)}, 0
            s_cbranch_scc1 {lab}
            s_lshl_b32 {s(sT0)}, {s(sRB)}, 4
            s_add_u32 {s(sT0)}, {s(sT0)}, {s(sHP)}
            s_lshl_b32 {s(sT0)}, {s(sT0)}, 2
            s_add_u32 {s(sT0)}, {s(sT0)}, {WS_FS}
            v_mov_b32 {v(vT)}, {s(sNonce)}
            v_mov_b32 {v(vU)}, 0
            s_mov_b64 exec, 1
            buffer_store_dword {v(vT)}, {v(vU)}, {s(SWS,4)}, {s(sT0)} offen sc1
            s_mov_b64 exec, -1
            {lab}:
            """)
        if c < 15: a("s_barrier")
        if c + 3 < 16: emit(chunk_dma(c + 3), ("C", c + 3))
        if c == 13:
            emit([f"s_mov_b32 {s(sSrc)}, {WS_FS}", f"buffer_load_dwordx4 {v(RB,4)}, {v(vL16)}, {s(SWS,4)}, {s(sSrc)} offen sc1"], "PS")
            a(f"""
            s_lshr_b32 {s(sT0)}, s2, 3
            s_and_b32 {s(sT0)}, {s(sT0)}, 3
            s_lshl2_add_u32 {s(sT0)}, {s(sT0)}, {s(sJ)}
            s_lshl_b32 {s(sT0)}, {s(sT0)}, 17
            s_and_b32 {s(sT1)}, s2, 4
            s_lshr_b32 {s(sT2)}, s2, 5
            s_lshl1_add_u32 {s(sT1)}, {s(sT1)}, {s(sT2)}
            s_lshl_b32 {s(sT1)}, {s(sT1)}, 7
            s_add_u32 {s(sT0)}, {s(sT0)}, {s(sT1)}
            v_lshlrev_b32 {v(vT)}, 11, {v(vLane)}
            """)
            emit([f"buffer_load_dword {v(vDummy)}, {v(vT)}, {s(SWA,4)}, {s(sT0)} offen",
                  f"buffer_load_dword {v(vDummy)}, {v(vT)}, {s(SWB,4)}, {s(sT0)} offen"], "PF")
        if c == 14:
            lp = a.newlabel(N + "_ps"); lo = a.newlabel(N + "_po")
            a(f"""
            s_waitcnt vmcnt({vm(['PS'])})
            {lp}:
            v_cmp_ne_u32 vcc, {s(sNonce)}, {v(RB)}
            v_cmp_ne_u32 {s(sT2,2)}, {s(sNonce)}, {v(RB+1)}
            s_or_b64 vcc, vcc, {s(sT2,2)}
            v_cmp_ne_u32 {s(sT2,2)}, {s(sNonce)}, {v(RB+2)}
            s_or_b64 vcc, vcc, {s(sT2,2)}
            v_cmp_ne_u32 {s(sT2,2)}, {s(sNonce)}, {v(RB+3)}
            s_or_b64 vcc, vcc, {s(sT2,2)}
            s_cbranch_vccz {lo}
            {spin(lo)}
            buffer_load_dwordx4 {v(RB,4)}, {v(vL16)}, {s(SWS,4)}, {s(sSrc)} offen sc1
            s_waitcnt vmcnt(0)
            s_branch {lp}
            {lo}:
            s_lshr_b32 {s(sT0)}, {s(sJ)}, 1
            s_lshl_b32 {s(sT0)}, {s(sT0)}, 17
            s_and_b32 {s(sT1)}, {s(sJ)}, 1
            s_lshl_b32 {s(sT1)}, {s(sT1)}, 12
            s_add_u32 {s(sT0)}, {s(sT0)}, {s(sT1)}
            s_add_u32 {s(sT0)}, {s(sT0)}, {WS_KVA}
            s_add_u32 m0, {s(sXd)}, {KVA_LDS}
            s_add_u32 {s(sT1)}, {s(sT0)}, 8192
            """)
            for q in range(4): a(f"buffer_load_dwordx4 {v(vL16)}, {s(SWS,4)}, {s(sT0)} offen offset:{q*1024} sc1 lds")
            a(f"s_add_u32 m0, {s(sXd)}, {KVA_LDS+16384}\ns_nop 0")
            for q in range(4): a(f"buffer_load_dwordx4 {v(vL16)}, {s(SWS,4)}, {s(sT1)} offen offset:{q*1024} sc1 lds")
    a(f"s_waitcnt vmcnt(0)\ns_branch {N}_join")

    sC, sRdSt, sDelta, sK1, sSc = range(sP0, sP0 + 5)
    sSc = 54
    vXA = 8; vWA = 12; vSt2 = 16
    FX = 20
    FW = [60, 76]
    ACC = 92
    a(f"{N}_compute:")
    t1, t2, vR0, vR1 = FX, FX + 1, FX + 2, FX + 3
    a(f"""
    s_waitcnt lgkmcnt(0)
    s_mov_b32 {s(sT1)}, {WS_X}
    s_load_dword {s(sNonce)}, {s(SWS,2)}, {s(sT1)}
    """)
    a(f"s_mov_b32 {s(SW+2)}, 0x200000\ns_mov_b32 {s(SSD)}, {s(sT2)}\ns_mov_b32 {s(SSD+1)}, {s(sT3)}\ns_mov_b32 {s(SSD+2)}, 0x600000")
    def xaddr(dst, vrow):
        a(f"""
        v_bfe_u32 {v(t1)}, {v(vrow)}, 1, 3
        v_bfe_u32 {v(t2)}, {v(vrow)}, 4, 1
        v_mul_u32_u24 {v(t2)}, 6, {v(t2)}
        v_xor_b32 {v(t1)}, {v(t1)}, {v(t2)}
        v_xor_b32 {v(t1)}, {v(t1)}, {v(vG)}
        v_lshlrev_b32 {v(t1)}, 4, {v(t1)}
        v_lshl_add_u32 {v(dst)}, {v(vrow)}, 7, {v(t1)}
        """)
    a(f"""
    v_mov_b32 {v(vR0)}, {v(vI)}
    v_add_u32 {v(vR1)}, 16, {v(vI)}
    s_cmp_lt_u32 {s(sW)}, 3
    s_cbranch_scc1 {N}_nov
    v_and_b32 {v(vR0)}, 12, {v(vI)}
    v_add_u32 {v(vR0)}, {v(vR0)}, {v(vI)}
    v_add_u32 {v(vR1)}, 4, {v(vR0)}
    {N}_nov:
    """)
    xaddr(vXA, vR0); xaddr(vXA + 1, vR1)
    a(f"""
    v_xor_b32 {v(vXA+2)}, 64, {v(vXA)}
    v_xor_b32 {v(vXA+3)}, 64, {v(vXA+1)}
    v_lshrrev_b32 {v(vT)}, 2, {v(vI)}
    v_lshl_add_u32 {v(t1)}, {v(vG)}, 3, {v(vT)}
    v_and_b32 {v(vU)}, 3, {v(vI)}
    v_lshlrev_b32 {v(vU)}, 3, {v(vU)}
    v_lshrrev_b32 {v(t2)}, 3, {v(vI)}
    v_lshl_or_b32 {v(t2)}, {v(t2)}, 5, {v(vU)}
    v_and_b32 {v(vU)}, 1, {v(vG)}
    v_lshl_or_b32 {v(t2)}, {v(vU)}, 6, {v(t2)}
    v_lshl_add_u32 {v(vWA)}, {v(t1)}, 7, {v(t2)}
    s_lshl_b32 {s(sT1)}, {s(sW)}, 13
    s_add_u32 {s(sT1)}, {s(sT1)}, 16384
    v_add_u32 {v(vWA)}, {s(sT1)}, {v(vWA)}
    v_xor_b32 {v(vWA+1)}, 32, {v(vWA)}
    v_xor_b32 {v(vWA+2)}, 64, {v(vWA)}
    v_xor_b32 {v(vWA+3)}, 0x60, {v(vWA)}
    s_mov_b32 {s(sC)}, 0
    s_mov_b32 {s(sRdSt)}, 0
    s_mov_b32 {s(sK1)}, {STAGE}
    """)
    for r in range(128): a(f"v_mov_b32 {v(ACC+r)}, 0")
    a("s_barrier")
    if Opt.pf:
        a(f"""
        v_lshlrev_b32 {v(vT)}, 7, {v(vLane)}
        s_cmp_eq_u32 {s(sW)}, 0
        s_cbranch_scc0 {N}_pf1
        s_lshl_b32 {s(sT1)}, s2, 14
        buffer_load_dword {v(vDummy)}, {v(vT)}, {s(SX,4)}, {s(sT1)} offen
        s_add_u32 {s(sT1)}, {s(sT1)}, 8192
        buffer_load_dword {v(vDummy)}, {v(vT)}, {s(SX,4)}, {s(sT1)} offen
        s_lshl_b32 {s(sT1)}, s2, 13
        buffer_load_dword {v(vDummy)}, {v(vT)}, {s(SW,4)}, {s(sT1)} offen
        s_branch {N}_pf2
        {N}_pf1:
        s_mul_i32 {s(sT1)}, s2, 3
        s_add_u32 {s(sT1)}, {s(sT1)}, {s(sW)}
        s_sub_u32 {s(sT1)}, {s(sT1)}, 1
        s_lshl_b32 {s(sT1)}, {s(sT1)}, 13
        buffer_load_dword {v(vDummy)}, {v(vT)}, {s(SSD,4)}, {s(sT1)} offen
        {N}_pf2:
        """)
    def xreg(ts, par): return FX + 4 * (ts if ts < 6 else ts + 2 * par)
    def rdx(st, ts): return f"ds_read_b128 {v(xreg(ts,st),4)}, {v(vXA+2*st+(ts&1))} offset:{(ts>>1)*4096}"
    def rdw(st, cs, u): return f"ds_read_b64_tr_b16 {v(FW[st]+4*cs+2*u,2)}, {v(vWA+cs)} offset:{st*4096+u*512}"
    order = [(ts, cs if ts % 2 == 0 else 3 - cs) for ts in range(8) for cs in range(4)]
    def mf(st, ts, cs, swap):
        if swap:
            acc = ACC + 16 * ((ts & 6) | (cs & 1)) + 4 * ((cs & 2) | (ts & 1))
            A, B = xreg(ts, st), FW[st] + 4 * cs
        else:
            acc = ACC + 16 * ts + 4 * cs
            A, B = FW[st] + 4 * cs, xreg(ts, st)
        return f"v_mfma_f32_16x16x32_bf16 {v(acc,4)}, {v(A,4)}, {v(B,4)}, {v(acc,4)}"
    a(f"""
    s_waitcnt lgkmcnt(0)
    s_mul_i32 {s(sNonce)}, {s(sNonce)}, 0x9E3779B1
    s_add_u32 {s(sNonce)}, {s(sNonce)}, 0x7F4A7C15
    s_barrier
    """)
    stamp(1)
    for cs in range(4): a(rdw(0, cs, 0)); a(rdw(0, cs, 1))
    for ts in (0, 1, 6, 7, 2, 3, 4, 5): a(rdx(0, ts))
    a(f"s_cmp_eq_u32 {s(sW)}, 3\ns_cbranch_scc1 {N}_vloop")
    def kstep(st, swap):
        n = st ^ 1
        fill = {i: [rdw(n, i >> 1, i & 1)] for i in range(8)}
        fill[3].append(rdx(n, 0)); fill[7].append(rdx(n, 1))
        fill[8] = [rdx(n, 6)]; fill[9] = [rdx(n, 7)]
        fill[11] = [rdx(n, 2)]; fill[15] = [rdx(n, 3)]; fill[19] = [rdx(n, 4)]; fill[23] = [rdx(n, 5)]
        add = lambda r: f"v_add_u32 {v(r)}, {s(sDelta)}, {v(r)}"
        if st == 0:
            fill[10] = [f"s_add_u32 {s(sRdSt)}, {s(sRdSt)}, 1", f"s_cmp_eq_u32 {s(sRdSt)}, 3"]
            fill[12] = [f"s_cselect_b32 {s(sRdSt)}, 0, {s(sRdSt)}", f"s_cselect_b32 {s(sDelta)}, {(-2*STAGE) & 0xffffffff}, {s(sK1)}"]
            for i, r in zip((13, 14, 16, 17, 18, 20), (vXA, vXA + 1, vWA, vWA + 1, vWA + 2, vWA + 3)): fill[i] = [add(r)]
            fill[30] = [f"s_cmp_eq_u32 {s(sC)}, 15"]
        else:
            fill[13] = [add(vXA + 2)]; fill[14] = [add(vXA + 3)]
            fill[16] = [f"s_add_u32 {s(sC)}, {s(sC)}, 1"]
            fill[30] = [f"s_cmp_lt_u32 {s(sC)}, 16"]
        for i, (ts, cs) in enumerate(order):
            if st == 0 and i == 0: a("s_waitcnt lgkmcnt(1)")
            if st == 0 and i == 8: a("s_waitcnt lgkmcnt(10)")
            a(mf(st, ts, cs, swap))
            for f in fill.get(i, []): a(f)
    for swap, lbl in [(False, "nloop"), (True, "vloop")]:
        a(f".p2align 6\n{N}_{lbl}:")
        kstep(0, swap)
        a(f"s_waitcnt lgkmcnt(0)\ns_cbranch_scc1 {N}_{lbl}_nb\ns_barrier\n{N}_{lbl}_nb:")
        kstep(1, swap)
        a(f"s_cbranch_scc1 {N}_{lbl}")
        if not swap: a(f"s_branch {N}_epi")
    a(f"{N}_epi:")
    stamp(2)
    a(f"""
    v_lshlrev_b32 {v(vT)}, 9, {v(vG)}
    v_lshl_add_u32 {v(vT)}, {v(vI)}, 4, {v(vT)}          ; G*512 + i*16
    s_waitcnt lgkmcnt(0)
    s_cmp_ge_u32 {s(sW)}, 2
    s_cbranch_scc1 {N}_epikv
    s_lshl_b32 {s(sT1)}, {s(sW)}, 14
    s_add_u32 {s(sT1)}, {s(sT1)}, {Q_LDS}
    v_add_u32 {v(vSt2)}, {s(sT1)}, {v(vT)}
    s_cmp_eq_u32 {s(sW)}, 0
    s_cbranch_scc1 {N}_nosc
    s_mov_b32 {s(sSc)}, {hex(f2u(QSCALE))}
    s_mov_b32 {s(sSc+1)}, {hex(f2u(QSCALE))}
    """)
    for r in range(0, 128, 2): a(f"v_pk_mul_f32 {v(ACC+r,2)}, {v(ACC+r,2)}, {s(sSc,2)}")
    a(f"{N}_nosc:")
    n = 0
    for tt in range(4):
        for q in range(2):
            for half in range(2):
                A = ACC + 16 * (2 * tt + half) + 8 * q; P = FX + 4 * n; n += 1
                for r in range(4): a(f"v_cvt_pk_bf16_f32 {v(P+r)}, {v(A+2*r)}, {v(A+2*r+1)}")
                a(f"ds_write_b128 {v(vSt2)}, {v(P,4)} offset:{(tt*2+q)*2048 + half*256}")
    a(f"""
    s_branch {N}_join
    {N}_epikv:
    s_and_b32 {s(sT0)}, {s(sW)}, 1
    s_lshl_b32 {s(sT0)}, {s(sT0)}, 11
    s_add_u32 {s(sT1)}, {s(sT0)}, 65536
    v_add_u32 {v(vSt2)}, {s(sT1)}, {v(vT)}
    s_lshl_b32 {s(sT1)}, {s(sHP)}, 19
    s_lshl_b32 {s(sT2)}, {s(sRB)}, 14
    s_add_u32 {s(sT1)}, {s(sT1)}, {s(sT2)}
    s_add_u32 {s(sT1)}, {s(sT1)}, {s(sT0)}
    """)
    n = 0
    for q in range(2):
        for tt in range(4):
            a(f"s_add_u32 {s(sT2)}, {s(sT1)}, {WS_KVB + q*262144 + tt*4096}")
            for half in range(2):
                A = ACC + 16 * (2 * tt + half) + 8 * q; P = FX + 4 * n; n += 1
                for r in range(4): a(f"v_cvt_pk_bf16_f32 {v(P+r)}, {v(A+2*r)}, {v(A+2*r+1)}")
                a(f"ds_write_b128 {v(vSt2)}, {v(P,4)} offset:{q*4096 + tt*8192 + half*256}")
                a(f"buffer_store_dwordx4 {v(P,4)}, {v(vT)}, {s(SWS,4)}, {s(sT2)} offen offset:{half*256} sc1")
    sIt, sSrc, sDst, sOoff, sN, sKV, sI, sPass, sNb, sNbD = range(sP0, sP0 + 10)
    ONES = 100; IDX = 104; vRd = 105; vGate = 106; vQ = 107; vSt = 108; vM = 109; vX = 110; vFl = 111
    QA = [112, 120]; QB = 128
    O = [136, 152]; L = [168, 172]
    S = [176, 192]; KF = [208, 216]; VF = [224, 232]
    CD = 8; CO = 24; CM = 40; CS = 56; PK = 240
    a(f"""
    {N}_join:
    s_waitcnt lgkmcnt(0)
    s_barrier
    """)
    stamp(3)
    a(f"""
    s_and_b32 {s(sT0)}, {s(sW)}, 3
    s_lshl1_add_u32 {s(sT1)}, {s(sT0)}, {s(sKH)}
    s_lshl_b32 {s(sT1)}, {s(sT1)}, 11
    s_add_u32 {s(sT1)}, {s(sT1)}, {Q_LDS}
    v_add_u32 {v(vT)}, {s(sT1)}, {v(vL16)}
    v_xor_b32 {v(vU)}, 2048, {v(vT)}
    s_lshl_b32 {s(sT2)}, {s(sKH)}, 13
    s_add_u32 {s(sT2)}, {s(sT2)}, {KVA_LDS}
    v_add_u32 {v(vRd)}, {s(sT2)}, {v(vL16)}
    ds_read_b128 {v(QA[0],4)}, {v(vT)}
    ds_read_b128 {v(QA[0]+4,4)}, {v(vT)} offset:1024
    """)
    def rdK(buf, off): return [f"ds_read_b128 {v(KF[buf],4)}, {v(vRd)} offset:{off}", f"ds_read_b128 {v(KF[buf]+4,4)}, {v(vRd)} offset:{off+1024}"]
    def rdV(buf, off): return [f"ds_read_b128 {v(VF[buf],4)}, {v(vRd)} offset:{off+2048}", f"ds_read_b128 {v(VF[buf]+4,4)}, {v(vRd)} offset:{off+3072}"]
    a("\n".join(rdK(0, 0)))
    a(f"""
    ds_read_b128 {v(QA[1],4)}, {v(vU)}
    ds_read_b128 {v(QA[1]+4,4)}, {v(vU)} offset:1024
    ds_read_b128 {v(QB,4)}, {v(vT)} offset:16384
    ds_read_b128 {v(QB+4,4)}, {v(vT)} offset:17408
    """)
    a("\n".join(rdV(0, 0)))
    a(f"""
    v_mov_b32 {v(IDX)}, 0xdddddddd
    v_and_b32 {v(vT)}, 7, {v(vLane)}
    v_mov_b32 {v(vU)}, 0x3f803f80
    v_cmp_eq_u32 vcc, 0, {v(vT)}
    v_cmp_eq_u32 {s(sT2,2)}, 4, {v(vT)}
    v_and_b32 {v(vQ)}, 31, {v(vLane)}
    v_cndmask_b32 {v(ONES)}, 0, {v(vU)}, vcc
    v_cndmask_b32 {v(ONES+1)}, 0, {v(vU)}, vcc
    v_cndmask_b32 {v(ONES+2)}, 0, {v(vU)}, {s(sT2,2)}
    v_cndmask_b32 {v(ONES+3)}, 0, {v(vU)}, {s(sT2,2)}
    s_lshl_b32 {s(sSrc)}, {s(sKH)}, 17
    s_lshl_b32 {s(sT2)}, {s(sT0)}, 11
    s_add_u32 {s(sSrc)}, {s(sSrc)}, {s(sT2)}
    s_add_u32 {s(sSrc)}, {s(sSrc)}, {WS_KVA + 16384}
    s_lshl_b32 {s(sDst)}, {s(sW)}, 11
    s_add_u32 {s(sDst)}, {s(sDst)}, {KVA_LDS}
    s_mov_b32 {s(sIt)}, 0
    s_waitcnt lgkmcnt(6)
    v_mfma_f32_32x32x16_bf16 {v(S[0],16)}, {v(KF[0],4)}, {v(QA[0],4)}, 0
    v_mfma_f32_32x32x16_bf16 {v(S[0],16)}, {v(KF[0]+4,4)}, {v(QA[0]+4,4)}, {v(S[0],16)}
    """)
    for r in range(40): a(f"v_mov_b32 {v(O[0]+r)}, 0")
    for r in range(8): a(f"v_mov_b32 {v(S[1]+8+r)}, 0")
    for r in range(4): a(f"v_mov_b32 {v(VF[1]+4+r)}, 0")
    a(f"s_waitcnt lgkmcnt(0)\n.p2align 6\n{N}_aloop:")

    def att_slot(Sc, Sp, Oc, Op, Lc, Lp, Kn, Qn, Cn, Vp, Vc, extra, skip=()):
        ops = {
            "PV1p": f"v_smfmac_f32_32x32x32_bf16 {v(Op,16)}, {v(Vp+4,4)}, {v(Sp+8,8)}, {v(IDX)}",
            "SUM1p": f"v_smfmac_f32_16x16x64_bf16 {v(Lp,4)}, {v(ONES,4)}, {v(Sp+8,8)}, {v(IDX)}",
            "QK0": f"v_mfma_f32_32x32x16_bf16 {v(Sp,16)}, {v(Kn,4)}, {v(Qn,4)}, {'0' if Cn is None else v(Cn,16)}",
            "QK1": f"v_mfma_f32_32x32x16_bf16 {v(Sp,16)}, {v(Kn+4,4)}, {v(Qn+4,4)}, {v(Sp,16)}",
            "PV0": f"v_smfmac_f32_32x32x32_bf16 {v(Oc,16)}, {v(Vc,4)}, {v(Sc,8)}, {v(IDX)}",
            "SUM0": f"v_smfmac_f32_16x16x64_bf16 {v(Lc,4)}, {v(ONES,4)}, {v(Sc,8)}, {v(IDX)}",
        }
        e = 0
        for tok in P1.split():
            if tok[0] == "e":
                for _ in range(int(tok[1:])):
                    a(f"v_exp_f32 {v(Sc+e)}, {v(Sc+e)}"); e += 1
            elif tok[0] == "x":
                for x in extra.get(tok, []): a(x)
            elif tok not in skip:
                a(ops[tok])
    def ring_dma(stage):
        lab = a.newlabel(N + "_rd")
        return [[f"s_cmp_eq_u32 {s(sIt)}, 7", f"s_cbranch_scc1 {lab}", f"s_add_u32 m0, {s(sDst)}, {stage*16384}", "s_nop 0",
                 f"buffer_load_dwordx4 {v(vL16)}, {s(SWS,4)}, {s(sSrc)} offen sc1 lds",
                 f"buffer_load_dwordx4 {v(vL16)}, {s(SWS,4)}, {s(sSrc)} offen offset:1024 sc1 lds", f"{lab}:"],
                [f"s_add_u32 {s(sSrc)}, {s(sSrc)}, 8192"]]
    for j in range(4):
        b = j & 1; nb = b ^ 1
        jn = (j + 1) & 3
        off = (jn >> 1) * 16384 + (jn & 1) * 4096
        k = rdK(nb, off); vv = rdV(nb, off)
        exa = {"x1": [k[0]], "x2": [k[1]], "x3": [vv[0]], "x4": [vv[1]]}
        exb = {"x1": ["s_waitcnt lgkmcnt(0)"]}
        if b == 1:
            d = ring_dma(j >> 1)
            exa["x1"] = ["s_waitcnt vmcnt(0)", "s_barrier"] + exa["x1"]
            exa["x5"] = d[0]; exa["x6"] = d[1]
        if j == 1:
            exb["x3"] = [f"s_branch {N}_hook", f"{N}_hookret:"]
        if j == 3:
            exb["x5"] = [f"s_add_u32 {s(sIt)}, {s(sIt)}, 1"]; exb["x6"] = [f"s_cmp_lt_u32 {s(sIt)}, 8"]
        att_slot(S[0], S[1], O[0], O[1], L[0], L[1], KF[b], QA[1], None, VF[nb], VF[b], exa)
        att_slot(S[1], S[0], O[1], O[0], L[1], L[0], KF[nb], QA[0], None, VF[b], VF[b], exb)
    a(f"""
    s_cbranch_scc1 {N}_aloop
    s_nop 0
    v_smfmac_f32_32x32x32_bf16 {v(O[1],16)}, {v(VF[1]+4,4)}, {v(S[1]+8,8)}, {v(IDX)}
    v_smfmac_f32_16x16x64_bf16 {v(L[1],4)}, {v(ONES,4)}, {v(S[1]+8,8)}, {v(IDX)}
    """)
    stamp(4)
    a(f"""
    s_lshl_b32 {s(sT2)}, {s(sW)}, 12
    s_add_u32 {s(sT2)}, {s(sT2)}, {KVA_LDS}
    v_add_u32 {v(vT)}, {s(sT2)}, {v(vL16)}
    v_xor_b32 {v(vU)}, 0x4000, {v(vT)}
    s_lshl_b32 {s(sT2)}, {s(sW)}, 8
    s_add_u32 {s(sT2)}, {s(sT2)}, {SCR_LDS}
    v_lshrrev_b32 {v(vX)}, 2, {v(vL16)}
    v_add_u32 {v(vX)}, {s(sT2)}, {v(vX)}
    v_xor_b32 {v(vM)}, 0x400, {v(vX)}
    s_barrier
    s_nop 1
    """)
    for q in range(4): a(f"ds_write_b128 {v(vT)}, {v(O[1]+4*q,4)} offset:{q*1024}")
    a(f"ds_write_b32 {v(vX)}, {v(L[1])}")
    a(f"""
    v_lshrrev_b32 {v(vX2)}, 5, {v(vLane)}
    v_lshlrev_b32 {v(vX2)}, 2, {v(vX2)}
    v_sub_u32 {v(vX2)}, {v(vQ)}, {v(vX2)}
    v_mov_b32 {v(vX)}, {s(sBig)}
    """)
    for r in range(16):
        c = 8 * (r >> 2) + (r & 3)
        sp = "vcc" if r & 1 else s(sT2, 2)
        a(f"v_cmp_gt_i32 {sp}, {c}, {v(vX2)}")
        a(f"v_mov_b32 {v(CM+r)}, 0")
        if r == 7: a("s_waitcnt lgkmcnt(0)\ns_barrier")
        if 8 <= r < 12: a(f"ds_read_b128 {v(O[1]+4*(r-8),4)}, {v(vU)} offset:{(r-8)*1024}")
        elif r == 12: a(f"ds_read_b32 {v(L[1])}, {v(vM)}")
        else: a("s_nop 0")
        a(f"v_cndmask_b32 {v(CD+r)}, 0, {v(vX)}, {sp}")
    a(f"""
    s_cmp_lt_u32 {s(sT)}, 8
    s_cselect_b32 {s(sT2)}, 0, 1.0
    s_and_b32 {s(sT0)}, {s(sW)}, 3
    s_lshl1_add_u32 {s(sT3)}, {s(sT0)}, {s(sKH)}
    s_lshl_b32 {s(sT3)}, {s(sT3)}, 12
    s_add_u32 {s(sT3)}, {s(sT3)}, 8192
    v_add_u32 {v(vRd)}, {s(sT3)}, {v(vL16)}
    """)
    boff = lambda i: (7 - i) * 8192 if i < 8 else 0
    for r in range(16): a(f"v_fma_f32 {v(CO+r)}, -{v(CD+r)}, {s(sT2)}, {v(vX)}")
    a(f"""
    v_lshlrev_b32 {v(vSt)}, 4, {v(vI)}
    v_bfe_u32 {v(vT)}, {v(vLane)}, 4, 1
    v_lshl_add_u32 {v(vSt)}, {v(vT)}, 10, {v(vSt)}
    v_lshrrev_b32 {v(vT)}, 5, {v(vLane)}
    v_lshl_add_u32 {v(vSt)}, {v(vT)}, 8, {v(vSt)}
    s_waitcnt lgkmcnt(0)
    """)
    for r in range(16): a(f"v_add_f32 {v(O[0]+r)}, {v(O[0]+r)}, {v(O[1]+r)}")
    a(f"v_add_f32 {v(L[0])}, {v(L[0])}, {v(L[1])}")
    def check(tag):
        a(f"v_add_f32 {v(vT)}, |{v(O[0])}|, |{v(O[0]+1)}|")
        a(f"v_add_f32 {v(vU)}, |{v(O[0]+2)}|, |{v(O[0]+3)}|")
        for r in range(4, 16, 2):
            a(f"v_add_f32 {v(vT)}, |{v(O[0]+r)}|, {v(vT)}")
            a(f"v_add_f32 {v(vU)}, |{v(O[0]+r+1)}|, {v(vU)}")
        a(f"""
        v_add_f32 {v(vT)}, {v(vU)}, {v(vT)}
        v_add_f32 {v(vT)}, {v(L[0])}, {v(vT)}
        v_cmp_gt_f32 vcc, {hex(f2u(2.0**100))}, {v(vT)}
        s_mov_b64 {s(sT2,2)}, vcc
        v_cmp_lt_f32 vcc, {hex(f2u(2.0**-30))}, {v(L[0])}
        s_and_b64 vcc, vcc, {s(sT2,2)}
        s_cmp_eq_u64 vcc, -1
        s_cbranch_scc0 {N}_slow{tag}
        {N}_back{tag}:
        """)
    def finish(isB):
        a(f"""
        v_rcp_f32 {v(vT)}, {v(L[0])}
        s_lshl_b32 {s(sOoff)}, {s(sT)}, 6
        s_add_u32 {s(sOoff)}, {s(sOoff)}, {s(sHead)}
        s_lshl_b32 {s(sOoff)}, {s(sOoff)}, 11
        s_add_u32 {s(sOoff)}, {s(sOoff)}, {WS_O + (65536 if isB else 0)}
        """)
        if isB: a(f"v_sub_f32 {v(vU)}, 1.0, {v(vGate)}\nv_mul_f32 {v(vT)}, {v(vT)}, {v(vU)}")
        else: a(f"v_mul_f32 {v(vT)}, {v(vT)}, {v(vGate)}")
        for r in range(16): a(f"v_mul_f32 {v(O[0]+r)}, {v(O[0]+r)}, {v(vT)}")
        for r in range(8): a(f"v_cvt_pk_bf16_f32 {v(PK+r)}, {v(O[0]+2*r)}, {v(O[0]+2*r+1)}")
        a(f"buffer_store_dwordx4 {v(PK,4)}, {v(vSt)}, {s(SWS,4)}, {s(sOoff)} offen sc1")
        a(f"buffer_store_dwordx4 {v(PK+4,4)}, {v(vSt)}, {s(SWS,4)}, {s(sOoff)} offen offset:512 sc1")
    def oflag(phase):
        return [f"s_lshl1_add_u32 {s(sT0)}, {s(sT)}, {s(sKH)}", f"s_lshl_b32 {s(sT0)}, {s(sT0)}, 5",
                f"s_add_u32 {s(sT0)}, {s(sT0)}, {s(sHP)}", f"s_lshl_b32 {s(sT0)}, {s(sT0)}, 2",
                f"s_add_u32 {s(sT0)}, {s(sT0)}, {WS_FO + phase*16384}",
                "s_mov_b64 exec, 1", f"buffer_store_dword {v(vFl)}, off, {s(SWS,4)}, {s(sT0)} sc1", "s_mov_b64 exec, -1"]
    check("A")
    a("\n".join(rdK(0, boff(0)) + rdK(1, boff(1)) + rdV(0, boff(0))))
    finish(False)
    stamp(5)
    sRB2, sCB, sT2g, sOs, sWs, sWd2 = 58, 59, 60, 61, 62, 63
    vDW0, vDW1 = 72, 73
    a(f"""
    s_waitcnt lgkmcnt(4)
    v_mfma_f32_32x32x16_bf16 {v(S[0],16)}, {v(KF[0],4)}, {v(QB,4)}, {v(CD,16)}
    v_mfma_f32_32x32x16_bf16 {v(S[0],16)}, {v(KF[0]+4,4)}, {v(QB+4,4)}, {v(S[0],16)}
    """)
    for r in range(16): a(f"v_mov_b32 {v(O[0]+r)}, 0")
    for r in range(4): a(f"v_mov_b32 {v(L[0]+r)}, 0")
    for r in range(8): a(f"v_mov_b32 {v(S[1]+8+r)}, 0")
    stage_of = [8, 6, 7, 0, 1, 2, 3, 4, 5, 8, 6, 7, 0, 1, 2, 3]
    def wdma(c):
        srdr = SWA if c < 8 else SWB
        st = stage_of[c] * 16384
        return [f"s_add_u32 m0, {s(sWd2)}, {st}", f"s_mov_b32 {s(sWs)}, {(c & 7) * 128 * 2048}",
                f"buffer_load_dwordx4 {v(vDW0)}, {s(srdr,4)}, {s(sWs)} offen lds",
                f"s_add_u32 m0, {s(sWd2)}, {st+1024}", "s_nop 0",
                f"buffer_load_dwordx4 {v(vDW1)}, {s(srdr,4)}, {s(sWs)} offen lds"]
    for n in range(9):
        c = n & 1; p = c ^ 1
        ex = {}
        if n + 1 <= 8:
            lab = a.newlabel(N + "_cm")
            pre = []
            if n + 1 <= 7:
                pre = [f"s_cmp_lg_u32 {s(sT)}, {n}", f"s_cbranch_scc1 {lab}"] + [f"v_mov_b32 {v(CM+r)}, {s(sBig)}" for r in range(16)] + [f"{lab}:"]
            ex["x1"] = ["s_waitcnt lgkmcnt(0)"] + rdV(p, boff(n + 1))[:1]
            ex["x2"] = pre + rdV(p, boff(n + 1))[1:]
            if n + 2 <= 8:
                ex["x3"] = rdK(c, boff(n + 2))[:1]; ex["x4"] = rdK(c, boff(n + 2))[1:]
                if n + 2 == 8: ex["x3"] = [f"v_subrev_u32 {v(vRd)}, 8192, {v(vRd)}"] + ex["x3"]
        else:
            ex["x1"] = ["s_waitcnt lgkmcnt(0)"]
        if n == 4: ex["x5"] = ["s_waitcnt vmcnt(0)"] + oflag(0)
        if n == 5: ex["x5"] = ["s_barrier"] + wdma(1)
        if n == 6: ex["x5"] = wdma(2)
        att_slot(S[c], S[p], O[0], O[0], L[0], L[0], KF[p], QB, CO if n + 1 == 8 else CM, VF[p], VF[c], ex,
                 skip=("QK0", "QK1") if n == 8 else ())
    vWA2 = 76
    FW2 = [8, 24]
    ACC2 = 40
    FO = 176
    log2 = []
    def emit2(ops, tag):
        for o in ops:
            a(o)
            if o.startswith("buffer_"): log2.append(tag)
    def vm2(tags):
        idx = [i for i, t in enumerate(log2) if t in tags]
        if not idx: return len(log2)
        return len(log2) - 1 - max(idx)
    a(f"""
    s_nop 1
    v_smfmac_f32_32x32x32_bf16 {v(O[0],16)}, {v(VF[0]+4,4)}, {v(S[0]+8,8)}, {v(IDX)}
    v_smfmac_f32_16x16x64_bf16 {v(L[0],4)}, {v(ONES,4)}, {v(S[0]+8,8)}, {v(IDX)}
    s_lshl1_add_u32 {s(sT0)}, {s(sT2g)}, {s(sKH)}
    s_lshl_b32 {s(sT0)}, {s(sT0)}, 7
    s_add_u32 {s(sN)}, {s(sT0)}, {WS_FO}
    v_lshlrev_b32 {v(vX2)}, 2, {v(vI)}
    buffer_load_dword {v(vM)}, {v(vX2)}, {s(SWS,4)}, {s(sN)} offen sc1
    s_barrier
    """)
    stamp(6)
    for c in range(3, 6): emit2(wdma(c), ("W", c))
    check("B")
    finish(True)
    log2.extend(["OBst", "OBst"])
    a(f"""
    s_waitcnt vmcnt({len(log2)})
    {N}_pollA:
    v_cmp_ne_u32 vcc, {s(sNonce)}, {v(vM)}
    s_cbranch_vccz {N}_pollAok
    {spin(N + '_pollAok')}
    buffer_load_dword {v(vM)}, {v(vX2)}, {s(SWS,4)}, {s(sN)} offen sc1
    s_waitcnt vmcnt(0)
    s_branch {N}_pollA
    {N}_pollAok:
    """)
    stamp(7)
    def oload(c, ks):
        r = FO + 16 * (c & 3) + 8 * ks
        return [f"buffer_load_dwordx4 {v(r,4)}, {v(vL16)}, {s(SWS,4)}, {s(sOs)} offen sc1",
                f"buffer_load_dwordx4 {v(r+4,4)}, {v(vL16)}, {s(SWS,4)}, {s(sOs)} offen offset:1024 sc1",
                f"s_add_u32 {s(sOs)}, {s(sOs)}, 4096"]
    for c in range(4):
        emit2(oload(c, 0), ("O", c, 0)); emit2(oload(c, 1), ("O", c, 1))
    for c in range(6, 9): emit2(wdma(c), ("W", c))
    for r in range(32): a(f"v_mov_b32 {v(ACC2+r)}, 0")
    def wreads(b, c, ks):
        st = stage_of[c]; base = vWA2 + 4 * (st >> 2); off = (st & 3) * 16384 + ks * 8192
        out = []
        for cs in range(4):
            out += [f"ds_read_b64_tr_b16 {v(FW2[b]+4*cs,2)}, {v(base+cs)} offset:{off}",
                    f"ds_read_b64_tr_b16 {v(FW2[b]+4*cs+2,2)}, {v(base+cs)} offset:{off+1024}"]
        return out
    a("\n".join(wreads(0, 0, 0)))
    order2 = [(0, 0), (1, 0), (1, 1), (0, 1), (0, 2), (1, 2), (1, 3), (0, 3)]
    for c in range(16):
        for ks in range(2):
            b = ks
            if ks == 0:
                rd = wreads(1, c, 1)
                a(f"s_waitcnt vmcnt({vm2([('O',c,0)])})")
                if c == 0:
                    emit2(oflag(1), "FL")
                if c == 3:
                    emit2([f"s_add_u32 {s(sN)}, {s(sN)}, 16384", f"buffer_load_dword {v(vM)}, {v(vX2)}, {s(SWS,4)}, {s(sN)} offen sc1"], "PB")
            else:
                if c < 15:
                    a(f"s_waitcnt vmcnt({vm2([('W',c+1),('O',c,1)])}) lgkmcnt(0)\ns_barrier")
                    rd = wreads(0, c + 1, 0)
                else:
                    a(f"s_waitcnt vmcnt(0) lgkmcnt(0)")
                    rd = []
            for i, (th, cs) in enumerate(order2):
                if ks == 0 and i % 2 == 0: a(f"s_waitcnt lgkmcnt(6)")
                a(f"v_mfma_f32_16x16x32_bf16 {v(ACC2+16*th+4*cs,4)}, {v(FW2[b]+4*cs,4)}, {v(FO+16*(c&3)+8*ks+4*th,4)}, {v(ACC2+16*th+4*cs,4)}")
                if i < len(rd): a(rd[i])
                if ks == 1 and i == 3 and c + 9 < 16: emit2(wdma(c + 9), ("W", c + 9))
            if c == 4 and ks == 0:
                a(f"""
                s_waitcnt vmcnt({vm2(['PB'])})
                {N}_pollB:
                v_cmp_ne_u32 vcc, {s(sNonce)}, {v(vM)}
                s_cbranch_vccz {N}_pollBok
                {spin(N + '_pollBok')}
                buffer_load_dword {v(vM)}, {v(vX2)}, {s(SWS,4)}, {s(sN)} offen sc1
                s_waitcnt vmcnt(0)
                s_branch {N}_pollB
                {N}_pollBok:
                """)
                stamp(8)
            if c + 4 < 16: emit2(oload(c + 4, ks), ("O", c + 4, ks))
    stamp(9)
    a(f"""
    s_barrier
    s_lshl_b32 {s(sT1)}, {s(sW)}, 12
    v_add_u32 {v(vT)}, {s(sT1)}, {v(vL16)}
    v_xor_b32 {v(vU)}, 0x4000, {v(vT)}
    s_nop 4
    s_cmp_eq_u32 {s(sKH)}, 0
    s_cbranch_scc1 {N}_k0
    """)
    for q in range(4): a(f"ds_write_b128 {v(vT)}, {v(ACC2+4*q,4)} offset:{q*1024}")
    a("s_waitcnt lgkmcnt(0)")
    for r in range(16): a(f"v_mov_b32 {v(ACC2+r)}, {v(ACC2+16+r)}")
    a(f"s_branch {N}_k1\n{N}_k0:")
    for q in range(4): a(f"ds_write_b128 {v(vT)}, {v(ACC2+16+4*q,4)} offset:{q*1024}")
    a(f"{N}_k1:\ns_waitcnt lgkmcnt(0)\ns_barrier")
    for q in range(4): a(f"ds_read_b128 {v(ACC2+16+4*q,4)}, {v(vU)} offset:{q*1024}")
    a(f"""
    s_lshl_b32 {s(sT1)}, {s(sT2g)}, 5
    s_lshl_b32 {s(sT2)}, {s(sKH)}, 4
    s_add_u32 {s(sT1)}, {s(sT1)}, {s(sT2)}
    s_lshl_b32 {s(sT1)}, {s(sT1)}, 11
    s_lshl_b32 {s(sT2)}, {s(sCB)}, 7
    s_add_u32 {s(sT1)}, {s(sT1)}, {s(sT2)}
    v_lshlrev_b32 {v(vT)}, 11, {v(vI)}
    v_lshl_add_u32 {v(vT)}, {v(vG)}, 3, {v(vT)}
    s_waitcnt lgkmcnt(0)
    """)
    for r in range(16): a(f"v_add_f32 {v(ACC2+r)}, {v(ACC2+r)}, {v(ACC2+16+r)}")
    for r in range(8): a(f"v_cvt_pk_bf16_f32 {v(FW2[0]+r)}, {v(ACC2+2*r)}, {v(ACC2+2*r+1)}")
    for cs in range(4): a(f"buffer_store_dwordx2 {v(FW2[0]+2*cs,2)}, {v(vT)}, {s(SO,4)}, {s(sT1)} offen offset:{cs*32}")
    if Opt.stamps:
        a("s_waitcnt vmcnt(0)")
        stamp(10); stamp(11); rstamp(NST + 1)
        a("s_waitcnt lgkmcnt(0)")
        a(f"s_lshl_b32 {s(sT0)}, s2, 3\ns_add_u32 {s(sT0)}, {s(sT0)}, {s(sW)}\ns_lshl_b32 {s(sT0)}, {s(sT0)}, 6\ns_add_u32 {s(sT0)}, {s(sT0)}, {WS_STAMP}")
        a("s_mov_b64 exec, 1")
        for i in range(NST + 2):
            a(f"v_mov_b32 v254, s{ST0+2*i}")
            a(f"buffer_store_dword v254, off, {s(SWS,4)}, {s(sT0)} offset:{4*i}")
    a(f"{N}_end:\ns_endpgm")

    a(f"""
    {N}_hook:
    s_cmp_eq_u32 {s(sIt)}, 0
    s_cbranch_scc0 {N}_h1
    v_mov_b32 {v(vFl)}, {s(sNonce)}
    s_sub_u32 {s(sT0)}, {s(sW)}, 2
    s_cmp_lt_u32 {s(sT0)}, 2
    s_cbranch_scc0 {N}_h0a
    s_lshl_b32 {s(sT1)}, {s(sHP)}, 4
    s_add_u32 {s(sT1)}, {s(sT1)}, {s(sRB)}
    s_lshl_b32 {s(sT1)}, {s(sT1)}, 5
    s_add_u32 {s(sT1)}, {s(sT1)}, {s(sT0)}
    s_lshl_b32 {s(sT1)}, {s(sT1)}, 2
    s_add_u32 {s(sT1)}, {s(sT1)}, {WS_FKV}
    s_mov_b64 exec, 1
    buffer_store_dword {v(vFl)}, off, {s(SWS,4)}, {s(sT1)} sc1
    s_mov_b64 exec, -1
    {N}_h0a:
    s_or_b32 {s(sT0)}, s2, {s(sW)}
    s_cmp_eq_u32 {s(sT0)}, 0
    s_cbranch_scc0 {N}_h0b
    s_mov_b32 {s(sT1)}, {WS_X}
    s_mov_b64 exec, 1
    buffer_store_dword {v(vFl)}, off, {s(SWS,4)}, {s(sT1)} sc1
    s_mov_b64 exec, -1
    {N}_h0b:
    v_lshlrev_b32 {v(vT)}, 2, {v(vQ)}
    s_lshl_b32 {s(sT1)}, {s(sT)}, 7
    s_add_u32 {s(sT1)}, {s(sT1)}, {WS_G}
    buffer_load_dword {v(vGate)}, {v(vT)}, {s(SWS,4)}, {s(sT1)} offen sc1
    s_and_b32 {s(sT0)}, s2, 3
    s_lshr_b32 {s(sT1)}, s2, 3
    s_and_b32 {s(sT2)}, {s(sT1)}, 3
    s_lshl2_add_u32 {s(sRB2)}, {s(sT0)}, {s(sT2)}
    s_and_b32 {s(sT0)}, s2, 4
    s_lshr_b32 {s(sT1)}, {s(sT1)}, 2
    s_lshl1_add_u32 {s(sCB)}, {s(sT0)}, {s(sT1)}
    s_and_b32 {s(sT0)}, {s(sW)}, 3
    s_lshl2_add_u32 {s(sT2g)}, {s(sRB2)}, {s(sT0)}
    v_lshrrev_b32 {v(vT)}, 3, {v(vLane)}
    s_lshl_b32 {s(sT1)}, {s(sW)}, 4
    v_add_u32 {v(vT)}, {s(sT1)}, {v(vT)}
    v_and_b32 {v(vU)}, 7, {v(vLane)}
    v_lshlrev_b32 {v(vDW1)}, 1, {v(vG)}
    v_xor_b32 {v(vU)}, {v(vU)}, {v(vDW1)}
    v_lshlrev_b32 {v(vU)}, 4, {v(vU)}
    s_lshl_b32 {s(sT1)}, {s(sCB)}, 7
    v_add_u32 {v(vU)}, {s(sT1)}, {v(vU)}
    v_lshl_add_u32 {v(vDW0)}, {v(vT)}, 11, {v(vU)}
    v_add_u32 {v(vDW1)}, 0x4000, {v(vDW0)}
    s_lshl_b32 {s(sWd2)}, {s(sW)}, 11
    s_lshl_b32 {s(sOs)}, {s(sT2g)}, 6
    s_add_u32 {s(sOs)}, {s(sOs)}, {s(sKH)}
    s_lshl_b32 {s(sOs)}, {s(sOs)}, 11
    s_add_u32 {s(sOs)}, {s(sOs)}, {WS_O}
    s_branch {N}_hookret
    {N}_h1:
    s_cmp_eq_u32 {s(sIt)}, 1
    s_cbranch_scc0 {N}_h2
    """)
    a("\n".join(wdma(0)))
    a(f"""
    v_lshrrev_b32 {v(vT)}, 1, {v(vG)}
    v_lshlrev_b32 {v(vT)}, 4, {v(vT)}
    v_and_b32 {v(vU)}, 1, {v(vG)}
    v_lshl_add_u32 {v(vT)}, {v(vU)}, 2, {v(vT)}
    v_lshrrev_b32 {v(vX2)}, 2, {v(vI)}
    v_add_u32 {v(vT)}, {v(vT)}, {v(vX2)}
    v_lshlrev_b32 {v(vU)}, 6, {v(vU)}
    v_lshrrev_b32 {v(vX2)}, 3, {v(vI)}
    v_lshl_or_b32 {v(vU)}, {v(vX2)}, 5, {v(vU)}
    v_and_b32 {v(vX2)}, 3, {v(vI)}
    v_lshl_or_b32 {v(vU)}, {v(vX2)}, 3, {v(vU)}
    v_lshl_add_u32 {v(vWA2)}, {v(vT)}, 7, {v(vU)}
    s_lshl_b32 {s(sT1)}, {s(sKH)}, 12
    v_add_u32 {v(vWA2)}, {s(sT1)}, {v(vWA2)}
    v_xor_b32 {v(vWA2+1)}, 32, {v(vWA2)}
    v_xor_b32 {v(vWA2+2)}, 64, {v(vWA2)}
    v_xor_b32 {v(vWA2+3)}, 0x60, {v(vWA2)}
    """)
    for i in range(8): a(f"v_add_u32 {v(vWA2+4+i)}, 0x10000, {v(vWA2+i)}")
    a(f"""
    s_branch {N}_hookret
    {N}_h2:
    s_cmp_eq_u32 {s(sIt)}, 2
    s_cbranch_scc0 {N}_h3
    s_and_b32 {s(sT0)}, {s(sW)}, 3
    s_lshr_b32 {s(sT1)}, {s(sT0)}, 1
    s_add_u32 {s(sT1)}, {s(sT1)}, {s(sRB)}
    s_sub_i32 {s(sT1)}, {s(sT1)}, 2
    s_max_i32 {s(sT1)}, {s(sT1)}, 0
    s_lshl_b32 {s(sT2)}, {s(sHP)}, 4
    s_add_u32 {s(sT2)}, {s(sT2)}, {s(sT1)}
    s_lshl_b32 {s(sT2)}, {s(sT2)}, 7
    s_add_u32 {s(sN)}, {s(sT2)}, {WS_FKV}
    buffer_load_dwordx2 {v(PK,2)}, off, {s(SWS,4)}, {s(sN)} sc1
    s_lshl_b32 {s(sNb)}, {s(sHead)}, 4
    s_add_u32 {s(sNb)}, {s(sNb)}, {s(sT1)}
    s_lshl_b32 {s(sNb)}, {s(sNb)}, 1
    s_and_b32 {s(sT2)}, {s(sT0)}, 1
    s_add_u32 {s(sNb)}, {s(sNb)}, {s(sT2)}
    s_lshl_b32 {s(sNb)}, {s(sNb)}, 13
    s_lshl2_add_u32 {s(sNbD)}, {s(sT0)}, {s(sKH)}
    s_lshl_b32 {s(sNbD)}, {s(sNbD)}, 12
    s_branch {N}_hookret
    {N}_h3:
    s_cmp_eq_u32 {s(sIt)}, 7
    s_cbranch_scc1 {N}_hookret
    s_cmp_eq_u32 {s(sIt)}, 3
    s_cbranch_scc0 {N}_h4
    {N}_h3p:
    v_cmp_ne_u32 vcc, {s(sNonce)}, {v(PK)}
    v_cmp_ne_u32 {s(sT2,2)}, {s(sNonce)}, {v(PK+1)}
    s_or_b64 vcc, vcc, {s(sT2,2)}
    s_cbranch_vccz {N}_h4
    {spin(N + '_h4')}
    buffer_load_dwordx2 {v(PK,2)}, off, {s(SWS,4)}, {s(sN)} sc1
    s_waitcnt vmcnt(0)
    s_branch {N}_h3p
    {N}_h4:
    s_mov_b32 m0, {s(sNbD)}
    s_add_u32 {s(sNbD)}, {s(sNbD)}, 2048
    s_bitcmp0_b32 {s(sIt)}, 0
    s_cselect_b32 {s(sT0)}, 4096, 0
    s_add_u32 {s(sNbD)}, {s(sNbD)}, {s(sT0)}
    buffer_load_dwordx4 {v(vL16)}, {s(SWS,4)}, {s(sNb)} offen sc1 lds
    buffer_load_dwordx4 {v(vL16)}, {s(SWS,4)}, {s(sNb)} offen offset:1024 sc1 lds
    s_add_u32 {s(sNb)}, {s(sNb)}, 2048
    s_branch {N}_hookret
    """)
    for isB in (True, False):
        tag = "B" if isB else "A"; Q = QB if isB else QA[0]
        vMx = PK + 8; vNx = PK + 9
        a(f"{N}_slow{tag}:")
        a(f"s_mov_b32 {s(sPass)}, 0\nv_mov_b32 {v(vMx)}, {s(sBig)}\nv_mov_b32 {v(vNx)}, 0")
        a(f"{N}_sp{tag}:")
        if isB:
            a(f"""
            s_lshl_b32 {s(sKV)}, {s(sHead)}, 6
            s_add_u32 {s(sKV)}, {s(sKV)}, {s(sT)}
            s_lshl_b32 {s(sKV)}, {s(sKV)}, 12
            """)
        else:
            a(f"s_mov_b32 {s(sKV)}, {WS_KVA}")
        a(f"s_mov_b32 {s(sI)}, 0")
        for r in range(16): a(f"v_mov_b32 {v(O[0]+r)}, 0")
        for r in range(4): a(f"v_mov_b32 {v(L[0]+r)}, 0")
        a(f"{N}_sl{tag}:")
        for q in range(2): a(f"buffer_load_dwordx4 {v(KF[0]+4*q,4)}, {v(vL16)}, {s(SWS,4)}, {s(sKV)} offen offset:{q*1024} sc1")
        for q in range(2): a(f"buffer_load_dwordx4 {v(VF[0]+4*q,4)}, {v(vL16)}, {s(SWS,4)}, {s(sKV)} offen offset:{2048+q*1024} sc1")
        if isB:
            a(f"""
            s_cmp_eq_u32 {s(sI)}, 0
            s_cselect_b32 {s(sT2)}, 1.0, 0
            s_cmp_eq_u32 {s(sI)}, 8
            s_cselect_b32 {s(sT3)}, 1.0, 0
            """)
            for r in range(16):
                a(f"v_fma_f32 {v(CS+r)}, {v(CD+r)}, {s(sT2)}, {v(vNx)}")
                a(f"v_fma_f32 {v(CS+r)}, {v(CO+r)}, {s(sT3)}, {v(CS+r)}")
        else:
            for r in range(16): a(f"v_mov_b32 {v(CS+r)}, {v(vNx)}")
        a(f"""
        s_waitcnt vmcnt(0)
        s_nop 1
        v_mfma_f32_32x32x16_bf16 {v(S[0],16)}, {v(KF[0],4)}, {v(Q,4)}, {v(CS,16)}
        v_mfma_f32_32x32x16_bf16 {v(S[0],16)}, {v(KF[0]+4,4)}, {v(Q+4,4)}, {v(S[0],16)}
        s_nop 15
        s_cmp_eq_u32 {s(sPass)}, 1
        s_cbranch_scc1 {N}_s1{tag}
        """)
        for r in range(0, 16, 2): a(f"v_max3_f32 {v(vMx)}, {v(S[0]+r)}, {v(S[0]+r+1)}, {v(vMx)}")
        a(f"s_branch {N}_s2{tag}\n{N}_s1{tag}:")
        for r in range(16): a(f"v_exp_f32 {v(S[0]+r)}, {v(S[0]+r)}")
        a(f"""
        s_nop 1
        v_smfmac_f32_32x32x32_bf16 {v(O[0],16)}, {v(VF[0],4)}, {v(S[0],8)}, {v(IDX)}
        v_smfmac_f32_32x32x32_bf16 {v(O[0],16)}, {v(VF[0]+4,4)}, {v(S[0]+8,8)}, {v(IDX)}
        v_smfmac_f32_16x16x64_bf16 {v(L[0],4)}, {v(ONES,4)}, {v(S[0],8)}, {v(IDX)}
        v_smfmac_f32_16x16x64_bf16 {v(L[0],4)}, {v(ONES,4)}, {v(S[0]+8,8)}, {v(IDX)}
        s_nop 15
        {N}_s2{tag}:
        s_add_u32 {s(sI)}, {s(sI)}, 1
        s_{'sub' if isB else 'add'}_u32 {s(sKV)}, {s(sKV)}, 4096
        """)
        if isB: a(f"s_min_u32 {s(sT2)}, {s(sT)}, 8\ns_cmp_le_u32 {s(sI)}, {s(sT2)}")
        else: a(f"s_cmp_lt_u32 {s(sI)}, 64")
        a(f"""
        s_cbranch_scc1 {N}_sl{tag}
        s_cmp_eq_u32 {s(sPass)}, 1
        s_cbranch_scc1 {N}_back{tag}
        v_mov_b32 {v(vNx)}, {v(vMx)}
        s_nop 1
        v_permlane32_swap_b32 {v(vNx)}, {v(vMx)}
        s_nop 1
        v_max_f32 {v(vMx)}, {v(vMx)}, {v(vNx)}
        v_sub_f32 {v(vNx)}, 0, {v(vMx)}
        s_mov_b32 {s(sPass)}, 1
        s_branch {N}_sp{tag}
        """)
    body = a.text()
    return f""".amdgcn_target "amdgcn-amd-amdhsa--gfx950"
.text
.globl {NAME}
.p2align 8
.type {NAME},@function
{NAME}:
""" + body + f""".section .rodata,"a"
.p2align 6
.amdhsa_kernel {NAME}
  .amdhsa_next_free_vgpr 256
  .amdhsa_next_free_sgpr 102
  .amdhsa_accum_offset 256
  .amdhsa_group_segment_fixed_size 0
  .amdhsa_kernarg_size 96
  .amdhsa_user_sgpr_count 2
  .amdhsa_user_sgpr_kernarg_segment_ptr 1
  .amdhsa_system_sgpr_workgroup_id_x 1
.end_amdhsa_kernel
"""

if __name__ == "__main__":
    txt = gen()
    bad = check_hazards(txt)
    print("hazards:", len(bad))
    HDR = open("gated_mix__grouped_kv_mqa__sliding_block__prompt.s.ref").read().split("; Override launch")[0]
    out = sys.argv[1] if len(sys.argv) > 1 else "fused.s"
    open(out, "w").write(HDR + f"; @launch grid=(256,1,1) block=(512,1,1) lds={LDS_BYTES}\n" + txt)
```

```python
NS = 12
def kern(name, body, iters, vgpr=256):
    s = f"""
.text
.globl {name}
.p2align 8
.type {name},@function
{name}:
    s_load_dwordx2 s[4:5], s[0:1], 0
    s_load_dwordx2 s[6:7], s[0:1], 8
    v_lshlrev_b32 v1, 4, v0
    s_waitcnt lgkmcnt(0)
""" + "".join(f"    global_load_dwordx4 v[{64+4*i}:{67+4*i}], v1, s[6:7]\n    v_add_u32 v1, 0x4000, v1\n" for i in range(32)) + "".join(f"    v_mov_b32 v{i}, 0\n" for i in list(range(2, 64)) + list(range(192, 256))) + f"""
    v_mov_b32 v2, 0xdddddddd
    s_waitcnt vmcnt(0)
    v_lshlrev_b32 v3, 4, v0
""" + "".join(f"    ds_write_b128 v3, v[{64+4*i}:{67+4*i}] offset:{8192*i}\n" for i in range(8)) + f"""
    v_and_b32 v1, 63, v0
    v_lshlrev_b32 v1, 4, v1
    s_waitcnt lgkmcnt(0)
    s_barrier
"""
    for r in range(NS):
        s += f"""
    s_memtime s[{20+4*r}:{21+4*r}]
    s_memrealtime s[{22+4*r}:{23+4*r}]
    s_mov_b32 s10, {iters}
    s_waitcnt lgkmcnt(0)
    s_getpc_b64 s[12:13]
    s_add_u32 s12, s12, 12
    s_addc_u32 s13, s13, 0
    s_branch L_{name}
"""
    s += f"""
    s_memtime s[{20+4*NS}:{21+4*NS}]
    s_memrealtime s[{22+4*NS}:{23+4*NS}]
    s_waitcnt lgkmcnt(0)
    s_lshl_b32 s7, s2, 7
    v_mov_b32 v3, s7
""" + "".join(f"    v_mov_b32 v4, s{20+4*r}\n    v_mov_b32 v5, s{22+4*r}\n    global_store_dwordx2 v3, v[4:5], s[4:5] offset:{8*r}\n" for r in range(NS + 1)) + f"""
    s_waitcnt vmcnt(0)
    s_endpgm
.p2align 6
L_{name}:
{body}
    s_sub_u32 s10, s10, 1
    s_cmp_lg_u32 s10, 0
    s_cbranch_scc1 L_{name}
    s_waitcnt lgkmcnt(0)
    s_setpc_b64 s[12:13]
.section .rodata,"a"
.p2align 6
.amdhsa_kernel {name}
  .amdhsa_next_free_vgpr {vgpr}
  .amdhsa_next_free_sgpr 102
  .amdhsa_accum_offset {vgpr}
  .amdhsa_group_segment_fixed_size 0
  .amdhsa_kernarg_size 96
  .amdhsa_user_sgpr_count 2
  .amdhsa_user_sgpr_kernarg_segment_ptr 1
  .amdhsa_system_sgpr_workgroup_id_x 1
.end_amdhsa_kernel
"""
    return s
```

```python
import sys, time
import numpy as np
from hiprun import *
from mb7k import kern, NS
def R(b, n=1): return f"v{b}" if n == 1 else f"v[{b}:{b+n-1}]"
ONES = 4
Q = [64, 72]; O = [192, 208]; L = [224, 232]; S = [8, 24]; KF = [96, 104]; VF = [112, 120]; PKR = [40, 48]
def emit(pattern, ops, Sc, cur, extra):
    out = []; e = 0; c = 0; ad = [0]
    for tok in pattern.split():
        if tok[0] == "e":
            for _ in range(int(tok[1:])): out.append(f"v_exp_f32 v{Sc+e}, v{Sc+e}"); e += 1
        elif tok[0] == "c":
            for _ in range(int(tok[1:])): out.append(f"v_cvt_pk_bf16_f32 v{PKR[cur]+c}, v{Sc+2*c}, v{Sc+2*c+1}"); c += 1
        elif tok[0] == "a":
            for _ in range(int(tok[1:])): out.append(f"v_add_f32 v{L[cur]+(ad[0]&3)}, v{L[cur]+(ad[0]&3)}, v{Sc+ad[0]}"); ad[0] += 1
        elif tok[0] == "x": out += extra.get(tok, [])
        else: out.append(ops[tok])
    assert e == 16
    return out
def slot(mode, cur, nxt, kb, vp, vc, pattern, extra):
    prev = nxt; Sc, Sp = S[cur], S[prev]
    o = {}
    if mode in ("raw32", "pk32"):
        o["QK0"] = f"v_mfma_f32_32x32x16_bf16 {R(Sp,16)}, {R(KF[kb],4)}, {R(Q[nxt],4)}, 0"
        o["QK1"] = f"v_mfma_f32_32x32x16_bf16 {R(Sp,16)}, {R(KF[kb]+4,4)}, {R(Q[nxt]+4,4)}, {R(Sp,16)}"
    else:
        for qs in range(2):
            for ks in range(2):
                o[f"QK{2*qs+ks}"] = f"v_mfma_f32_16x16x32_bf16 {R(Sp+8*qs+4*ks,4)}, {R(KF[kb]+4*ks,4)}, {R(Q[nxt]+4*qs,4)}, 0"
    if mode == "raw32":
        o["PV1p"] = f"v_smfmac_f32_32x32x32_bf16 {R(O[prev],16)}, {R(VF[vp]+4,4)}, {R(Sp+8,8)}, v2"
        o["SUM1p"] = f"v_smfmac_f32_16x16x64_bf16 {R(L[prev],4)}, {R(ONES,4)}, {R(Sp+8,8)}, v2"
        o["SUM0p"] = f"v_smfmac_f32_16x16x64_bf16 {R(L[prev],4)}, {R(ONES,4)}, {R(Sp,8)}, v2"
        o["PV0"] = f"v_smfmac_f32_32x32x32_bf16 {R(O[cur],16)}, {R(VF[vc],4)}, {R(Sc,8)}, v2"
        o["SUM0"] = f"v_smfmac_f32_16x16x64_bf16 {R(L[cur],4)}, {R(ONES,4)}, {R(Sc,8)}, v2"
    if mode == "pk32":
        o["PV1p"] = f"v_mfma_f32_32x32x16_bf16 {R(O[prev],16)}, {R(VF[vp]+4,4)}, {R(PKR[prev]+4,4)}, {R(O[prev],16)}"
        o["SUM1p"] = f"v_smfmac_f32_16x16x64_bf16 {R(L[prev],4)}, {R(ONES,4)}, {R(PKR[prev],8)}, v2"
        o["PV0"] = f"v_mfma_f32_32x32x16_bf16 {R(O[cur],16)}, {R(VF[vc],4)}, {R(PKR[cur],4)}, {R(O[cur],16)}"
    if mode == "raw16":
        for d in range(2):
            o[f"PV1p{d}"] = f"v_smfmac_f32_16x16x64_bf16 {R(O[prev]+8+4*d,4)}, {R(VF[vp]+4*d,4)}, {R(Sp+8,8)}, v2"
            o[f"PV0{d}"] = f"v_smfmac_f32_16x16x64_bf16 {R(O[cur]+4*d,4)}, {R(VF[vc]+4*d,4)}, {R(Sc,8)}, v2"
        o["SUM1p"] = f"v_smfmac_f32_16x16x64_bf16 {R(L[prev]+4,4)}, {R(ONES,4)}, {R(Sp+8,8)}, v2"
        o["SUM0"] = f"v_smfmac_f32_16x16x64_bf16 {R(L[cur],4)}, {R(ONES,4)}, {R(Sc,8)}, v2"
    if mode == "pk16":
        for d in range(2):
            o[f"PV1p{d}"] = f"v_mfma_f32_16x16x32_bf16 {R(O[prev]+8+4*d,4)}, {R(VF[vp]+4*d,4)}, {R(PKR[prev]+4,4)}, {R(O[prev]+8+4*d,4)}"
            o[f"PV0{d}"] = f"v_mfma_f32_16x16x32_bf16 {R(O[cur]+4*d,4)}, {R(VF[vc]+4*d,4)}, {R(PKR[cur],4)}, {R(O[cur]+4*d,4)}"
        o["SUM1p"] = f"v_smfmac_f32_16x16x64_bf16 {R(L[prev],4)}, {R(ONES,4)}, {R(PKR[prev],8)}, v2"
    return emit(pattern, o, Sc, cur, extra)
def attn(mode, pattern, unroll=8, lds=True):
    out = []
    for j in range(unroll):
        b = j & 1; nb = b ^ 1; off = (j % 8) * 8192
        ea = {"x1": [f"ds_read_b128 {R(KF[nb],4)}, v1 offset:{off}"], "x2": [f"ds_read_b128 {R(KF[nb]+4,4)}, v1 offset:{off+1024}"],
              "x3": [f"ds_read_b128 {R(VF[nb],4)}, v1 offset:{off+2048}"], "x4": [f"ds_read_b128 {R(VF[nb]+4,4)}, v1 offset:{off+3072}"]} if lds else {}
        eb = {"x1": ["s_waitcnt lgkmcnt(0)"]}
        out += slot(mode, 0, 1, b, nb, b, pattern, ea) + slot(mode, 1, 0, nb, b, b, pattern, eb)
    return "".join("    " + o + "\n" for o in out)
B = {}
p1 = "e2 PV1p x1 e3 SUM1p x2 e1 QK0 x3 e3 QK1 x4 e3 PV0 e3 SUM0 e1"
B["raw32"] = attn("raw32", p1)
B["sumadj"] = attn("raw32", "e2 SUM0p SUM1p x1 e2 PV1p x2 e3 QK0 x3 e3 QK1 x4 e3 PV0 e3")
B["sumadj2"] = attn("raw32", "e1 SUM0p e1 SUM1p x1 e2 PV1p x2 e3 QK0 x3 e3 QK1 x4 e3 PV0 e3")
B["pvadj"] = attn("raw32", "e2 PV1p x1 e3 SUM1p x2 e1 QK0 x3 e3 QK1 x4 e4 SUM0 e1 PV0 e2")
B["p4"] = attn("raw32", "e2 PV1p x1 e3 SUM1p x2 e1 QK0 x3 e3 QK1 x4 e4 PV0 e3 SUM0")
B["raw32_z"] = B["raw32"]
B["raw32_4"] = B["raw32"]
B["raw32_b"] = B["raw32"]
pre = """    v_and_b32 v7, 0x70, v1
    v_cmp_eq_u32 vcc, 0, v7
    v_mov_b32 v7, 0x3f803f80
    s_nop 1
    v_cndmask_b32 v4, 0, v7, vcc
    v_cndmask_b32 v5, 0, v7, vcc
    v_mov_b32 v6, 0
    v_mov_b32 v7, 0
    s_waitcnt lgkmcnt(0)
"""
def kk(n, b):
    s = kern(n, b, 1)
    if n.endswith("_z"): return s.replace("    s_waitcnt lgkmcnt(0)\n    s_barrier\n", pre.replace("0x3f803f80", "0") + "    s_barrier\n", 1)
    if n.endswith("_4"): return s.replace("    s_waitcnt lgkmcnt(0)\n    s_barrier\n", pre.replace("0x70", "0x30") + "    s_barrier\n", 1)
    return s.replace("    s_waitcnt lgkmcnt(0)\n    s_barrier\n", pre + "    s_barrier\n", 1)
src = '.amdgcn_target "amdgcn-amd-amdhsa--gfx950"\n' + "".join(kk("k_" + k, v) for k, v in B.items())
co = assemble(src, ["k_" + k for k in B], "mb22", vgpr=256)
if len(sys.argv) > 1 and sys.argv[1] == "build": sys.exit(0)
m = Mod(co)
out = Buf(256 * 128)
rng = np.random.default_rng(0)
def tobf(x): return (np.asarray(x, np.float32).view(np.uint32) >> 16).astype(np.uint16)
db = Buf.of(tobf(rng.standard_normal(1 << 20) * 0.65))
res = {k: [] for k in B}
for rep in range(10):
    for k in B:
        sync(); time.sleep(0.01)
        m.launch("k_" + k, [256], [512], [out.ptr, db.ptr], lds=65536 + 8192); sync()
        o = out.down(np.uint32).reshape(256, 16, 2)[:, :NS + 1].astype(np.int64)
        res[k].append((np.median(o[:, NS, 1] - o[:, 0, 1]) / 100, np.median(o[:, NS, 0] - o[:, 0, 0])))
for k in B:
    tot = np.median([t[0] for t in res[k]]); cyc = np.median([t[1] for t in res[k]])
    nt = NS * 16 * 2
    print("%-14s tot %.1f us clk %.3f ns/tile %.1f cyc/tile %.1f" % (k, tot, cyc / tot / 1000, tot * 1000 / nt, cyc / nt))
```
